```python
import torch

def _softmax(x, axis=-1):
    return torch.softmax(x, dim=axis)

def _gelu(x):
    return torch.nn.functional.gelu(x, approximate='tanh')

def _silu(x):
    return torch.nn.functional.silu(x)

def _sigmoid(x):
    return torch.sigmoid(x)

def _layernorm(x, axis=-1, eps=1e-05):
    m = x.mean(dim=axis, keepdim=True)
    v = x.var(dim=axis, keepdim=True, unbiased=False)
    return (x - m) / torch.sqrt(v + eps)

def _scatter_add(tgt, idx, src, axis=0):
    return tgt.clone().index_add_(axis, idx, src)

def _segment_sum(src, seg, n):
    out = torch.zeros((n,) + src.shape[1:], dtype=src.dtype)
    return out.index_add_(0, seg, src)

def _pad(x, pw):
    flat = tuple((v for pair in reversed(pw) for v in pair))
    return torch.nn.functional.pad(x, flat)
kernel_name = 'standalone__window_attn_cswin__vision'

def setup_inputs():

    _w = lambda a: (lambda t: t.to(torch.bfloat16) if t.is_floating_point() else t)(torch.as_tensor(a))
    sw = 8
    H = W = 224 // sw * sw
    C = 96 // 2 * 2
    return {'x': _w((lambda *s: torch.randn(*s, dtype=torch.bfloat16) * 0.4)(1, H, W, C)), 'wqkv': _w((lambda *s: torch.randn(*s, dtype=torch.bfloat16) * 0.4)(C, 3 * C)), 'wo': _w((lambda *s: torch.randn(*s, dtype=torch.bfloat16) * 0.05)(C, C))}

def reference(x, wqkv, wo):
    B, H, W, C = x.shape
    sw = 8
    C2 = C // 2
    nh, nw = (H // sw, W // sw)
    qkv = torch.einsum('bhwc,cd->bhwd', x, wqkv)
    q, k, v = (qkv[..., :C].clone(), qkv[..., C:2 * C].clone(), qkv[..., 2 * C:].clone())
    scale = C2 ** (-0.5)
    qh = q[..., :C2].reshape(B * nh, sw * W, C2)
    kh = k[..., :C2].reshape(B * nh, sw * W, C2)
    vh = v[..., :C2].reshape(B * nh, sw * W, C2)
    ah = _softmax(torch.einsum('bqc,bkc->bqk', qh, kh) * scale, axis=-1)
    oh = torch.einsum('bqk,bkc->bqc', ah, vh).reshape(B, H, W, C2)
    qv = (lambda x, *d: x.permute(*d))(q[..., C2:].reshape(B, H, nw, sw, C2), 0, 2, 1, 3, 4).reshape(B * nw, H * sw, C2)
    kv = (lambda x, *d: x.permute(*d))(k[..., C2:].reshape(B, H, nw, sw, C2), 0, 2, 1, 3, 4).reshape(B * nw, H * sw, C2)
    vv = (lambda x, *d: x.permute(*d))(v[..., C2:].reshape(B, H, nw, sw, C2), 0, 2, 1, 3, 4).reshape(B * nw, H * sw, C2)
    av = _softmax(torch.einsum('bqc,bkc->bqk', qv, kv) * scale, axis=-1)
    ov = torch.einsum('bqk,bkc->bqc', av, vv).reshape(B, nw, H, sw, C2)
    ov = (lambda x, *d: x.permute(*d))(ov, 0, 2, 1, 3, 4).reshape(B, H, W, C2)
    o = _pad(oh, ((0, 0), (0, 0), (0, 0), (0, C2))) + _pad(ov, ((0, 0), (0, 0), (0, 0), (C2, 0)))
    return torch.einsum('bhwc,cd->bhwd', o, wo)
```

```python
class Asm:
    def __init__(self):
        self.lines = []
        self.uid = 0
    def __call__(self, s):
        for l in s.split('\n'):
            l = l.strip()
            if not l: continue
            if l.endswith(':') or l.startswith('.') or l.startswith(';'):
                self.lines.append(l)
            else:
                self.lines.append('    ' + l)
    def c(self, s):
        self.lines.append('    ; ' + s)
    def label(self, p='L'):
        self.uid += 1
        return f'{p}_{self.uid}'
    def text(self):
        return '\n'.join(self.lines) + '\n'

def vr(a, n=1):
    return f'v{a}' if n == 1 else f'v[{a}:{a+n-1}]'
def sr(a, n=1):
    return f's{a}' if n == 1 else f's[{a}:{a+n-1}]'
```

```python
import sys
from asmlib import Asm, vr, sr

NT = 56
TILE_B = 6144
KV_OFF = 0
Q_OFF = 56*56*6144
O_OFF = Q_OFF + 56*56*3072
STAT_OFF = O_OFF + 56*56*3072
WS_USED = STAT_OFF + 224*16*32
GROUP_B = 8*TILE_B
LDS_RING = 3*GROUP_B
LDS_BYTES = LDS_RING + 0

O0, O1, SA, SB, NM, Q, K, V0, V1 = 0, 16, 32, 48, 64, 80, 92, 104, 112
IDX, KA, VA, V1A, T0, T1, T2, LANE = 120, 121, 122, 123, 124, 125, 126, 127

S_WS = 4
SRD = 8
S_WIN, S_QTR, S_WAVE, S_G, S_DELTA, S_SLOT, S_T, S_T2, S_QT, S_PAR = 12, 13, 14, 15, 16, 17, 18, 19, 20, 21
S_MASK = 22
S_KVBASE = 24
S_PT = 25
S_TM = 30
S_U0 = 26

OPT = set()
def qk(a, dst, cinit):
    a(f'v_mfma_f32_32x32x16_bf16 {vr(dst,16)}, {vr(K,4)}, {vr(Q,4)}, {cinit}')
    a(f'v_mfma_f32_32x32x16_bf16 {vr(dst,16)}, {vr(K+4,4)}, {vr(Q+4,4)}, {vr(dst,16)}')
    a(f'v_mfma_f32_32x32x16_bf16 {vr(dst,16)}, {vr(K+8,4)}, {vr(Q+8,4)}, {vr(dst,16)}')

def read_k(a, off):
    if 'nolds' in OPT and 'inloop' in OPT: return
    for s in range(3):
        a(f'ds_read_b128 {vr(K+4*s,4)}, {vr(KA)} offset:{off + 1024*s}')

def read_v(a, off):
    if 'nolds' in OPT and 'inloop' in OPT: return
    a(f'ds_read_b128 {vr(V0,4)}, {vr(VA)} offset:{off + 3072}')
    a(f'ds_read_b128 {vr(V0+4,4)}, {vr(VA)} offset:{off + 4096}')
    a(f's_mov_b64 exec, {sr(S_MASK,2)}')
    a(f'ds_read_b128 {vr(V1,4)}, {vr(V1A)} offset:{off + 5120}')
    a(f'ds_read_b128 {vr(V1+4,4)}, {vr(V1A)} offset:{off + 5120 + 512}')
    a(f's_mov_b64 exec, -1')

def unit_dense(a, cur, nxt, koff, voff, kswitch=False, vswitch=False):
    ex = lambda i: a(f'v_exp_f32 {vr(cur+i)}, {vr(cur+i)}')
    cv = lambda d,i: a(f'v_cvt_pk_bf16_f32 {vr(cur+d)}, {vr(cur+i)}, {vr(cur+i+1)}')
    a('s_waitcnt lgkmcnt(4)')
    a(f'v_mfma_f32_32x32x16_bf16 {vr(nxt,16)}, {vr(K,4)}, {vr(Q,4)}, {vr(NM,16)}')
    ex(0); ex(1); ex(2); cv(0,0)
    a(f'v_mfma_f32_32x32x16_bf16 {vr(nxt,16)}, {vr(K+4,4)}, {vr(Q+4,4)}, {vr(nxt,16)}')
    ex(3); ex(4); cv(1,2); ex(5)
    a(f'v_mfma_f32_32x32x16_bf16 {vr(nxt,16)}, {vr(K+8,4)}, {vr(Q+8,4)}, {vr(nxt,16)}')
    if kswitch:
        a(f'v_add_u32 {vr(KA)}, {sr(S_DELTA)}, {vr(KA)}')
    ex(6); cv(2,4); ex(7)
    read_k(a, koff)
    ex(8); cv(3,6); ex(9)
    a('s_waitcnt lgkmcnt(3)')
    a(f'v_mfma_f32_32x32x16_bf16 {vr(O0,16)}, {vr(V0,4)}, {vr(cur,4)}, {vr(O0,16)}')
    ex(10); cv(8,8); ex(11)
    a(f'v_mfma_f32_32x32x16_bf16 {vr(O1,16)}, {vr(V1,4)}, {vr(cur,4)}, {vr(O1,16)}')
    ex(12); cv(9,10); ex(13); ex(14); cv(10,12); ex(15)
    if vswitch:
        a(f'v_add_u32 {vr(VA)}, {sr(S_DELTA)}, {vr(VA)}')
        a(f'v_add_u32 {vr(V1A)}, {sr(S_DELTA)}, {vr(V1A)}')
    else:
        a('s_nop 0')
    cv(11,14)
    a('s_nop 1')
    a(f'v_mfma_f32_32x32x16_bf16 {vr(O0,16)}, {vr(V0+4,4)}, {vr(cur+8,4)}, {vr(O0,16)}')
    a(f'v_mfma_f32_32x32x16_bf16 {vr(O1,16)}, {vr(V1+4,4)}, {vr(cur+8,4)}, {vr(O1,16)}')
    read_v(a, voff)

def unit(a, cur, nxt, koff, voff, kswitch=False, vswitch=False):
    if 'dense' in OPT: return unit_dense(a, cur, nxt, koff, voff, kswitch, vswitch)
    if 'noexp' in OPT or 'nopv' in OPT or 'noqk' in OPT:
        b = Asm(); OPT2 = set(OPT); OPT.discard('noexp'); OPT.discard('nopv'); OPT.discard('noqk')
        unit(b, cur, nxt, koff, voff, kswitch, vswitch)
        OPT.update(OPT2)
        for l in b.lines:
            if 'noexp' in OPT2 and 'v_exp' in l: continue
            if 'nopv' in OPT2 and 'smfmac' in l: continue
            if 'noqk' in OPT2 and 'v_mfma' in l: continue
            a.lines.append(l)
        return
    ex = lambda i: a(f'v_exp_f32 {vr(cur+i)}, {vr(cur+i)}')
    a('s_waitcnt lgkmcnt(4)')
    a(f'v_mfma_f32_32x32x16_bf16 {vr(nxt,16)}, {vr(K,4)}, {vr(Q,4)}, {vr(NM,16)}')
    ex(0); ex(1); ex(2)
    a(f'v_mfma_f32_32x32x16_bf16 {vr(nxt,16)}, {vr(K+4,4)}, {vr(Q+4,4)}, {vr(nxt,16)}')
    ex(3); ex(4); ex(5)
    a(f'v_mfma_f32_32x32x16_bf16 {vr(nxt,16)}, {vr(K+8,4)}, {vr(Q+8,4)}, {vr(nxt,16)}')
    if kswitch:
        a(f'v_add_u32 {vr(KA)}, {sr(S_DELTA)}, {vr(KA)}')
    ex(6); ex(7)
    read_k(a, koff)
    ex(8)
    a('s_waitcnt lgkmcnt(3)')
    a(f'v_smfmac_f32_32x32x32_bf16 {vr(O0,16)}, {vr(V0,4)}, {vr(cur,8)}, {vr(IDX)}')
    ex(9); ex(10); ex(11)
    a(f'v_smfmac_f32_32x32x32_bf16 {vr(O1,16)}, {vr(V1,4)}, {vr(cur,8)}, {vr(IDX)}')
    ex(12); ex(13); ex(14); ex(15)
    if vswitch:
        a(f'v_add_u32 {vr(VA)}, {sr(S_DELTA)}, {vr(VA)}')
        a(f'v_add_u32 {vr(V1A)}, {sr(S_DELTA)}, {vr(V1A)}')
    else:
        a('s_nop 1')
    a(f'v_smfmac_f32_32x32x32_bf16 {vr(O0,16)}, {vr(V0+4,4)}, {vr(cur+8,8)}, {vr(IDX)}')
    a(f'v_smfmac_f32_32x32x32_bf16 {vr(O1,16)}, {vr(V1+4,4)}, {vr(cur+8,8)}, {vr(IDX)}')
    read_v(a, voff)

def dma_group(a, gexpr_sgpr, slot_sgpr):
    a(f's_lshl_b32 {sr(S_T)}, {sr(gexpr_sgpr)}, 3')
    a(f's_lshr_b32 {sr(S_T2)}, {sr(S_WAVE)}, 1')
    a(f's_add_u32 {sr(S_T)}, {sr(S_T)}, {sr(S_T2)}')
    a(f's_add_u32 {sr(S_T)}, {sr(S_T)}, {sr(S_U0)}')
    a(f's_cmp_ge_u32 {sr(S_T)}, 56')
    a(f's_cselect_b32 {sr(S_T2)}, 56, 0')
    a(f's_sub_u32 {sr(S_T)}, {sr(S_T)}, {sr(S_T2)}')
    a(f's_mul_i32 {sr(S_T)}, {sr(S_T)}, {TILE_B}')
    a(f's_add_u32 {sr(S_T)}, {sr(S_T)}, {sr(S_KVBASE)}')
    a(f's_mul_i32 {sr(S_T2)}, {sr(slot_sgpr)}, {GROUP_B}')
    a(f's_mul_i32 m0, {sr(S_WAVE)}, 3072')
    a(f's_add_u32 m0, m0, {sr(S_T2)}')
    a(f'v_lshlrev_b32 {vr(T0)}, 4, {vr(LANE)}')
    for i in range(3):
        a(f'buffer_load_dwordx4 {vr(T0)}, {sr(SRD,4)}, {sr(S_T)} offen offset:{1024*i} lds')

def gen(stamp=True, prio=False):
    a = Asm()
    a(f'; @launch grid=(224,1,1) block=(1024,1,1) lds={LDS_BYTES}')
    a('.amdgcn_target "amdgcn-amd-amdhsa--gfx950"')
    a('.text')
    a('.globl attn_kernel')
    a('.p2align 8')
    a('.type attn_kernel,@function')
    a('attn_kernel:')
    a('s_cmp_ge_u32 s2, 224')
    a('s_cbranch_scc1 L_end')
    a(f's_load_dwordx2 {sr(S_WS,2)}, s[0:1], 40')
    if stamp: a(f's_memtime {sr(S_TM,2)}'); a('s_memrealtime s[42:43]')
    a(f'v_and_b32 {vr(LANE)}, 63, v0')
    a(f'v_lshrrev_b32 {vr(T0)}, 6, v0')
    a('s_nop 0')
    a(f'v_readfirstlane_b32 {sr(S_WAVE)}, {vr(T0)}')
    a(f's_and_b32 {sr(S_T)}, s2, 7')
    a(f's_lshr_b32 {sr(S_T2)}, s2, 3')
    a(f's_mul_i32 {sr(S_WIN)}, {sr(S_T)}, 7')
    a(f's_and_b32 {sr(S_QTR)}, {sr(S_T2)}, 3')
    a(f's_lshr_b32 {sr(S_T2)}, {sr(S_T2)}, 2')
    a(f's_add_u32 {sr(S_WIN)}, {sr(S_WIN)}, {sr(S_T2)}')
    a(f's_mul_i32 {sr(S_U0)}, {sr(S_QTR)}, 14')
    a(f's_cmp_ge_u32 {sr(S_WAVE)}, 12')
    a(f's_cselect_b32 {sr(S_PT)}, 1, 0')
    a(f's_sub_u32 {sr(S_T)}, {sr(S_WAVE)}, 12')
    a(f's_lshr_b32 {sr(S_T)}, {sr(S_T)}, 1')
    a(f's_add_u32 {sr(S_T)}, {sr(S_T)}, 12')
    a(f's_cmp_ge_u32 {sr(S_WAVE)}, 12')
    a(f's_cselect_b32 {sr(S_QT)}, {sr(S_T)}, {sr(S_WAVE)}')
    a(f's_and_b32 {sr(S_PAR)}, {sr(S_WAVE)}, 1')
    a(f's_mul_i32 {sr(S_PAR)}, {sr(S_PAR)}, {sr(S_PT)}')
    a(f's_mov_b32 s40, {GROUP_B}')
    a(f's_mov_b32 s41, {-2*GROUP_B & 0xffffffff}')
    a(f's_mov_b32 {sr(S_MASK)}, 0x0000ffff')
    a(f's_mov_b32 {sr(S_MASK+1)}, 0x0000ffff')
    a('s_waitcnt lgkmcnt(0)')
    a(f's_mov_b32 {sr(SRD)}, {sr(S_WS)}')
    a(f's_and_b32 {sr(SRD+1)}, {sr(S_WS+1)}, 0xffff')
    a(f's_mov_b32 {sr(SRD+2)}, {WS_USED}')
    a(f's_mov_b32 {sr(SRD+3)}, 0x20000')
    a(f's_mul_i32 {sr(S_KVBASE)}, {sr(S_WIN)}, {56*TILE_B}')
    a(f's_and_b32 {sr(S_T)}, {sr(S_WAVE)}, 1')
    a(f's_mul_i32 {sr(S_T)}, {sr(S_T)}, 3072')
    a(f's_add_u32 {sr(S_KVBASE)}, {sr(S_KVBASE)}, {sr(S_T)}')
    if KV_OFF: a(f's_add_u32 {sr(S_KVBASE)}, {sr(S_KVBASE)}, {KV_OFF}')
    a(f's_mov_b32 {sr(S_G)}, 0')
    a(f's_mov_b32 {sr(S_SLOT)}, 0')
    dma_group(a, S_G, S_SLOT)
    a(f's_mov_b32 {sr(S_G)}, 1')
    a(f's_mov_b32 {sr(S_SLOT)}, 1')
    dma_group(a, S_G, S_SLOT)
    a(f's_mul_i32 {sr(S_T)}, {sr(S_WIN)}, 56')
    a(f's_add_u32 {sr(S_T)}, {sr(S_T)}, {sr(S_U0)}')
    a(f's_add_u32 {sr(S_T)}, {sr(S_T)}, {sr(S_QT)}')
    a(f's_mul_i32 {sr(S_T)}, {sr(S_T)}, 3072')
    a(f's_add_u32 {sr(S_T)}, {sr(S_T)}, {Q_OFF}')
    a(f'v_lshlrev_b32 {vr(T0)}, 4, {vr(LANE)}')
    for s in range(3):
        a(f'buffer_load_dwordx4 {vr(Q+4*s,4)}, {vr(T0)}, {sr(SRD,4)}, {sr(S_T)} offen offset:{1024*s}')
    for i in range(32): a(f'v_mov_b32 {vr(O0+i)}, 0')
    if 'zrows' in OPT:
        a(f'v_and_b32 {vr(T1)}, 31, {vr(LANE)}')
        a(f'v_cmp_eq_u32 vcc, 16, {vr(T1)}')
        a(f'v_mov_b32 {vr(T2)}, 0x3f803f80')
        a('s_nop 1')
        for i in range(8): a(f'v_cndmask_b32 {vr(V1+i)}, 0, {vr(T2)}, vcc')
    else:
        for i in range(8): a(f'v_mov_b32 {vr(V1+i)}, 0x3f803f80')
    a(f'v_mov_b32 {vr(IDX)}, 0xdddddddd')
    a(f'v_lshlrev_b32 {vr(KA)}, 4, {vr(LANE)}')
    a(f'v_lshrrev_b32 {vr(T1)}, 5, {vr(LANE)}')
    a(f'v_lshlrev_b32 {vr(T1)}, 8, {vr(T1)}')
    a(f'v_and_b32 {vr(T2)}, 15, {vr(LANE)}')
    a(f'v_lshlrev_b32 {vr(T2)}, 4, {vr(T2)}')
    a(f'v_add_u32 {vr(V1A)}, {vr(T1)}, {vr(T2)}')
    a(f's_mul_i32 {sr(S_T)}, {sr(S_PAR)}, {TILE_B}')
    a(f'v_add_u32 {vr(VA)}, {sr(S_T)}, {vr(KA)}')
    a(f'v_add_u32 {vr(V1A)}, {sr(S_T)}, {vr(V1A)}')
    a('s_waitcnt vmcnt(0)')
    a('s_barrier')
    if stamp: a(f's_memtime {sr(S_TM+2,2)}')
    read_k(a, 0)
    a('s_waitcnt lgkmcnt(0)')
    qk(a, SA, '0')
    a(f'v_mov_b32 {vr(KA)}, {vr(VA)}')
    a('s_nop 15')
    a(f'v_max3_f32 {vr(T0)}, {vr(SA)}, {vr(SA+1)}, {vr(SA+2)}')
    for i in range(3, 15, 2):
        a(f'v_max3_f32 {vr(T0)}, {vr(T0)}, {vr(SA+i)}, {vr(SA+i+1)}')
    a(f'v_max_f32 {vr(T0)}, {vr(T0)}, {vr(SA+15)}')
    a(f'v_mov_b32 {vr(T1)}, {vr(T0)}')
    a('s_nop 1')
    a(f'v_permlane32_swap_b32 {vr(T0)}, {vr(T1)}')
    a('s_nop 1')
    a(f'v_max_f32 {vr(T0)}, {vr(T0)}, {vr(T1)}')
    for i in range(16):
        a(f'v_sub_f32 {vr(NM+i)}, 0, {vr(T0)}')
    read_k(a, 0)
    a('s_waitcnt lgkmcnt(0)')
    qk(a, SA, vr(NM,16))
    a(f's_cmp_eq_u32 {sr(S_PT)}, 1')
    a('s_cbranch_scc1 L_pt')

    def loop(tag, st):
        n = 8 // st
        read_k(a, st*TILE_B)
        read_v(a, 0)
        a(f's_mov_b32 {sr(S_G)}, 0')
        a(f's_mov_b32 {sr(S_SLOT)}, 0')
        OPT.add('inloop')
        a('.p2align 6')
        a(f'L_loop_{tag}:')
        a(f's_cmp_ge_u32 {sr(S_G)}, 5')
        a(f's_cbranch_scc1 L_nodma_{tag}')
        a(f's_add_u32 {sr(S_DELTA)}, {sr(S_G)}, 2')
        a(f's_add_u32 {sr(S_TM+6)}, {sr(S_SLOT)}, 2')
        a(f's_cmp_ge_u32 {sr(S_TM+6)}, 3')
        a(f's_cselect_b32 {sr(S_TM+7)}, 3, 0')
        a(f's_sub_u32 {sr(S_TM+6)}, {sr(S_TM+6)}, {sr(S_TM+7)}')
        dma_group(a, S_DELTA, S_TM+6)
        a(f'L_nodma_{tag}:')
        a(f's_cmp_eq_u32 {sr(S_SLOT)}, 2')
        a(f's_cselect_b32 {sr(S_DELTA)}, s41, s40')
        for i in range(n):
            cur, nxt = (SA, SB) if i % 2 == 0 else (SB, SA)
            if prio:
                a(f's_setprio {max(0, 3 - (i*st)//2)}')
            kt = i*st + 2*st
            vt = i*st + st
            ksw = (kt >= 8 and kt - st < 8)
            vsw = (vt >= 8)
            unit(a, cur, nxt, (kt % 8 if kt >= 8 else kt)*TILE_B, (vt % 8)*TILE_B, kswitch=ksw, vswitch=vsw)
        a(f's_add_u32 {sr(S_SLOT)}, {sr(S_SLOT)}, 1')
        a(f's_cmp_eq_u32 {sr(S_SLOT)}, 3')
        a(f's_cselect_b32 {sr(S_SLOT)}, 0, {sr(S_SLOT)}')
        a(f's_add_u32 {sr(S_G)}, {sr(S_G)}, 1')
        a('s_waitcnt vmcnt(0)')
        if 'nobar' not in OPT: a('s_barrier')
        OPT.discard('inloop')
        a(f's_cmp_lt_u32 {sr(S_G)}, 7')
        a(f's_cbranch_scc1 L_loop_{tag}')
    loop('ft', 1)
    a('s_branch L_epi')
    a('L_pt:')
    loop('pt', 2)
    a('L_epi:')
    if stamp: a(f's_memtime {sr(S_TM+4,2)}')
    a('s_waitcnt lgkmcnt(0)')
    a('s_nop 15')
    a(f's_sub_u32 {sr(S_T)}, {sr(S_QT)}, 12')
    a(f's_lshl_b32 {sr(S_T)}, {sr(S_T)}, 13')
    a(f'v_lshlrev_b32 {vr(T0)}, 4, {vr(LANE)}')
    a(f'v_add_u32 {vr(T0)}, {sr(S_T)}, {vr(T0)}')
    a(f's_cmp_eq_u32 {sr(S_PAR)}, 1')
    a('s_cbranch_scc0 L_nowr')
    for i in range(7):
        a(f'ds_write_b128 {vr(T0)}, {vr(O0+4*i,4)} offset:{1024*i}')
    a('s_waitcnt lgkmcnt(0)')
    a('L_nowr:')
    a('s_barrier')
    a(f's_cmp_eq_u32 {sr(S_PAR)}, 1')
    a('s_cbranch_scc1 L_done')
    a(f's_cmp_eq_u32 {sr(S_PT)}, 1')
    a('s_cbranch_scc0 L_norm')
    for i in range(7):
        a(f'ds_read_b128 {vr(SA+4*i,4)}, {vr(T0)} offset:{1024*i}')
    a('s_waitcnt lgkmcnt(0)')
    for i in range(28):
        a(f'v_add_f32 {vr(O0+i)}, {vr(O0+i)}, {vr(SA+i)}')
    a('L_norm:')
    if 'zrows' in OPT:
        a(f'v_mov_b32 {vr(T2)}, {vr(O1+8)}')
        a('s_nop 1')
        a(f'v_permlane32_swap_b32 {vr(O1+8)}, {vr(T2)}')
        a('s_nop 1')
    a(f'v_rcp_f32 {vr(T1)}, {vr(O1+8)}')
    a('s_nop 0')
    for i in range(24):
        a(f'v_mul_f32 {vr(O0+i)}, {vr(O0+i)}, {vr(T1)}')
    for i in range(12):
        a(f'v_cvt_pk_bf16_f32 {vr(SA+i)}, {vr(O0+2*i)}, {vr(O0+2*i+1)}')
    a(f's_mul_i32 {sr(S_T)}, {sr(S_WIN)}, 56')
    a(f's_add_u32 {sr(S_T)}, {sr(S_T)}, {sr(S_U0)}')
    a(f's_add_u32 {sr(S_T)}, {sr(S_T)}, {sr(S_QT)}')
    a(f's_mul_i32 {sr(S_T)}, {sr(S_T)}, 3072')
    a(f's_add_u32 {sr(S_T)}, {sr(S_T)}, {O_OFF}')
    a(f'v_lshlrev_b32 {vr(T0)}, 4, {vr(LANE)}')
    for s in range(3):
        a(f'buffer_store_dwordx4 {vr(SA+4*s,4)}, {vr(T0)}, {sr(SRD,4)}, {sr(S_T)} offen offset:{1024*s}')
    a('L_done:')
    if stamp:
        a('s_waitcnt vmcnt(0)')
        a(f's_memtime {sr(S_TM+6,2)}')
        a('s_memrealtime s[44:45]')
        a('s_waitcnt lgkmcnt(0)')
        a(f's_lshl_b32 {sr(S_T)}, s2, 4')
        a(f's_add_u32 {sr(S_T)}, {sr(S_T)}, {sr(S_WAVE)}')
        a(f's_lshl_b32 {sr(S_T)}, {sr(S_T)}, 5')
        a(f's_add_u32 {sr(S_T)}, {sr(S_T)}, {STAT_OFF}')
        for i in range(4):
            a(f'v_mov_b32 {vr(SA+i)}, {sr(S_TM+2*i)}')
        a(f's_getreg_b32 {sr(S_T2)}, hwreg(HW_REG_HW_ID)')
        a(f'v_mov_b32 {vr(SA+4)}, {sr(S_T2)}')
        a(f's_getreg_b32 {sr(S_T2)}, hwreg(HW_REG_XCC_ID)')
        a(f'v_mov_b32 {vr(SA+5)}, {sr(S_T2)}')
        a(f'v_mov_b32 {vr(SA+6)}, s42')
        a(f'v_mov_b32 {vr(SA+7)}, s44')
        a(f'v_mov_b32 {vr(T0)}, 0')
        a(f'v_cmp_eq_u32 vcc, 0, {vr(LANE)}')
        a(f's_and_saveexec_b64 {sr(S_MASK,2)}, vcc')
        a(f'buffer_store_dwordx4 {vr(SA,4)}, {vr(T0)}, {sr(SRD,4)}, {sr(S_T)} offen')
        a(f'buffer_store_dwordx4 {vr(SA+4,4)}, {vr(T0)}, {sr(SRD,4)}, {sr(S_T)} offen offset:16')
        a('s_waitcnt vmcnt(0)')
    a('L_end:')
    a('s_endpgm')
    a('.section .rodata,"a"')
    a('.p2align 6')
    a('.amdhsa_kernel attn_kernel')
    a('.amdhsa_next_free_vgpr 128')
    a('.amdhsa_next_free_sgpr 64')
    a('.amdhsa_accum_offset 128')
    a('.amdhsa_group_segment_fixed_size 0')
    a('.amdhsa_kernarg_size 48')
    a('.amdhsa_user_sgpr_count 2')
    a('.amdhsa_user_sgpr_kernarg_segment_ptr 1')
    a('.amdhsa_system_sgpr_workgroup_id_x 1')
    a('.end_amdhsa_kernel')
    return a.text()

if __name__ == '__main__':
    prio = 'prio' in sys.argv
    OPT.update(sys.argv[2:])
    out = sys.argv[1]
    open(out, 'w').write(gen(prio=prio))
```

```python
import sys
from asmlib import Asm, vr, sr
import gen_attn1 as A1

TILE_B = 6144
KV_OFF, Q_OFF, O_OFF = A1.KV_OFF, A1.Q_OFF, A1.O_OFF
WS_USED = A1.WS_USED
X_BYTES = 224*224*96*2
QSCALE = 48 ** -0.5 * 1.4426950408889634
import struct
def f32bits(x): return struct.unpack('<I', struct.pack('<f', x))[0]

def kd(a, name, nv, ns):
    a('.section .rodata,"a"\n.p2align 6')
    a(f'.amdhsa_kernel {name}')
    a(f'.amdhsa_next_free_vgpr {nv}\n.amdhsa_next_free_sgpr {ns}\n.amdhsa_accum_offset {(nv+3)//4*4}')
    a('.amdhsa_group_segment_fixed_size 0\n.amdhsa_kernarg_size 48\n.amdhsa_user_sgpr_count 2\n.amdhsa_user_sgpr_kernarg_segment_ptr 1\n.amdhsa_system_sgpr_workgroup_id_x 1\n.end_amdhsa_kernel')
    a('.text')

def srd(a, d, ptr, size):
    a(f's_mov_b32 s{d}, s{ptr}')
    a(f's_and_b32 s{d+1}, s{ptr+1}, 0xffff')
    a(f's_mov_b32 s{d+2}, {size}')
    a(f's_mov_b32 s{d+3}, 0x20000')

def gen_k1(a):
    X, W, ACC, T0, T1, T2, T3, LANE, TR, XO = 0, 24, 32, 112, 113, 114, 115, 116, 117, 118
    a('.p2align 8\n.globl proj_kernel\n.type proj_kernel,@function\nproj_kernel:')
    a('s_cmp_ge_u32 s2, 224')
    a('s_cbranch_scc1 L_k1_end')
    a('s_load_dwordx4 s[4:7], s[0:1], 0')
    a('s_load_dwordx2 s[8:9], s[0:1], 40')
    a(f'v_and_b32 {vr(LANE)}, 63, v0')
    a(f'v_lshrrev_b32 {vr(T0)}, 6, v0')
    a('s_nop 0')
    a(f'v_readfirstlane_b32 s14, {vr(T0)}')
    a('s_and_b32 s18, s2, 7\ns_lshr_b32 s19, s2, 3\ns_mul_i32 s12, s18, 7\ns_and_b32 s13, s19, 3\ns_lshr_b32 s19, s19, 2\ns_add_u32 s12, s12, s19')
    a('s_cmp_ge_u32 s12, 28\ns_cselect_b32 s15, 1, 0')
    a('s_waitcnt lgkmcnt(0)')
    srd(a, 20, 4, X_BYTES)
    srd(a, 24, 6, 96*288*2)
    srd(a, 28, 8, WS_USED)
    a('s_mul_i32 s16, s15, 96')
    for i in range(4):
        a(f'v_add_u32 {vr(T0)}, {512*i}, v0')
        a(f'v_mul_u32_u24 {vr(T1)}, 3641, {vr(T0)}')
        a(f'v_lshrrev_b32 {vr(T1)}, 16, {vr(T1)}')
        a(f'v_mul_u32_u24 {vr(T2)}, 18, {vr(T1)}')
        a(f'v_sub_u32 {vr(T2)}, {vr(T0)}, {vr(T2)}')
        a(f'v_mul_u32_u24 {vr(T3)}, 43, {vr(T2)}')
        a(f'v_lshrrev_b32 {vr(T3)}, 8, {vr(T3)}')
        a(f'v_mul_u32_u24 {vr(T3)}, 96, {vr(T3)}')
        a(f'v_lshlrev_b32 {vr(T2)}, 4, {vr(T2)}')
        a(f'v_mul_u32_u24 {vr(32+8*i)}, 320, {vr(T1)}')
        a(f'v_add_u32 {vr(32+8*i)}, {vr(32+8*i)}, {vr(T2)}')
        a(f'v_mul_u32_u24 {vr(T1)}, 576, {vr(T1)}')
        a(f'v_add3_u32 {vr(T1)}, {vr(T1)}, {vr(T2)}, {vr(T3)}')
        a(f'v_add_u32 {vr(T1)}, s16, {vr(T1)}')
        if i == 3:
            pass
        a(f'buffer_load_dwordx4 {vr(36+8*i,4)}, {vr(T1)}, s[24:27], 0 offen')
    a('s_waitcnt vmcnt(0)')
    for i in range(3):
        a(f'ds_write_b128 {vr(32+8*i)}, {vr(36+8*i,4)}')
    a(f'v_cmp_gt_u32 vcc, {1728-1536}, v0')
    a('s_and_saveexec_b64 s[34:35], vcc')
    a(f'ds_write_b128 {vr(56)}, {vr(60,4)}')
    a('s_mov_b64 exec, s[34:35]')
    a(f'v_lshrrev_b32 {vr(T0)}, 5, {vr(LANE)}')
    a(f'v_lshlrev_b32 {vr(T0)}, 3, {vr(T0)}')
    a(f'v_bfe_u32 {vr(T1)}, {vr(LANE)}, 2, 2')
    a(f'v_add_u32 {vr(T0)}, {vr(T0)}, {vr(T1)}')
    a(f'v_mul_u32_u24 {vr(T0)}, 320, {vr(T0)}')
    a(f'v_bfe_u32 {vr(T1)}, {vr(LANE)}, 4, 1')
    a(f'v_lshlrev_b32 {vr(T1)}, 5, {vr(T1)}')
    a(f'v_and_b32 {vr(T2)}, 3, {vr(LANE)}')
    a(f'v_lshlrev_b32 {vr(T2)}, 3, {vr(T2)}')
    a(f'v_add3_u32 {vr(TR)}, {vr(T0)}, {vr(T1)}, {vr(T2)}')
    a(f'v_bfe_u32 {vr(T0)}, {vr(LANE)}, 3, 2')
    a(f'v_mul_u32_u24 {vr(T0)}, 224, {vr(T0)}')
    a(f'v_and_b32 {vr(T1)}, 7, {vr(LANE)}')
    a(f'v_add_u32 {vr(T0)}, {vr(T0)}, {vr(T1)}')
    a(f'v_mul_u32_u24 {vr(T0)}, 192, {vr(T0)}')
    a(f'v_lshrrev_b32 {vr(T1)}, 5, {vr(LANE)}')
    a(f'v_lshlrev_b32 {vr(T1)}, 4, {vr(T1)}')
    a(f'v_add_u32 {vr(XO)}, {vr(T0)}, {vr(T1)}')
    a('s_waitcnt lgkmcnt(0)')
    a('s_barrier')
    a('s_mov_b32 s17, s14')
    a('L_k1_tile:')
    a('s_cmp_ge_u32 s17, 14')
    a('s_cbranch_scc1 L_k1_end')
    a('s_mul_i32 s18, s13, 14\ns_add_u32 s18, s18, s17')
    a('s_lshr_b32 s19, s18, 1\ns_and_b32 s33, s18, 1\ns_lshl_b32 s34, s12, 1\ns_add_u32 s34, s34, s33')
    a('s_sub_u32 s35, s12, 28')
    a('s_cmp_eq_u32 s15, 1')
    a('s_cselect_b32 s19, s35, s19\ns_cselect_b32 s34, s18, s34')
    a('s_mul_i32 s34, s34, 896\ns_lshl_b32 s19, s19, 3\ns_add_u32 s34, s34, s19\ns_mul_i32 s34, s34, 192')
    for ks in range(6):
        a(f'buffer_load_dwordx4 {vr(X+4*ks,4)}, {vr(XO)}, s[20:23], s34 offen offset:{32*ks}')
    a('s_mul_i32 s36, s12, 56\ns_add_u32 s36, s36, s18')
    first = True
    seq = [(ks, b) for ks in range(6) for b in range(5)]
    def rd(n, buf):
        ks, b = seq[n]
        off = ks*16*320 + b*64
        a(f'ds_read_b64_tr_b16 {vr(W+4*buf,2)}, {vr(TR)} offset:{off}')
        a(f'ds_read_b64_tr_b16 {vr(W+4*buf+2,2)}, {vr(TR)} offset:{off+4*320}')
    rd(0, 0)
    a('s_waitcnt vmcnt(0)')
    for n, (ks, b) in enumerate(seq):
        buf = n % 2
        if n+1 < len(seq):
            rd(n+1, 1-buf)
            a('s_waitcnt lgkmcnt(2)')
        else:
            a('s_waitcnt lgkmcnt(0)')
        c = '0' if ks == 0 else vr(ACC+16*b,16)
        if b < 3:
            a(f'v_mfma_f32_32x32x16_bf16 {vr(ACC+16*b,16)}, {vr(W+4*buf,4)}, {vr(X+4*ks,4)}, {c}')
        else:
            a(f'v_mfma_f32_32x32x16_bf16 {vr(ACC+16*b,16)}, {vr(X+4*ks,4)}, {vr(W+4*buf,4)}, {c}')
    a('s_nop 15')
    a(f's_mov_b32 s37, {f32bits(QSCALE)}')
    for i in range(24): a(f'v_mul_f32 {vr(ACC+i)}, s37, {vr(ACC+i)}')
    for i in range(12): a(f'v_cvt_pk_bf16_f32 {vr(X+i)}, {vr(ACC+2*i)}, {vr(ACC+2*i+1)}')
    for i in range(12): a(f'v_cvt_pk_bf16_f32 {vr(X+12+i)}, {vr(ACC+24+2*i)}, {vr(ACC+24+2*i+1)}')
    a(f'v_lshlrev_b32 {vr(T0)}, 4, {vr(LANE)}')
    a(f's_mul_i32 s37, s36, 3072\ns_add_u32 s37, s37, {Q_OFF}')
    for s in range(3):
        a(f'buffer_store_dwordx4 {vr(X+4*s,4)}, {vr(T0)}, s[28:31], s37 offen offset:{1024*s}')
    a(f'v_and_b32 {vr(T1)}, 0x33, {vr(LANE)}')
    a(f'v_bfe_u32 {vr(T2)}, {vr(LANE)}, 2, 1')
    a(f'v_lshl_or_b32 {vr(T1)}, {vr(T2)}, 3, {vr(T1)}')
    a(f'v_bfe_u32 {vr(T2)}, {vr(LANE)}, 3, 1')
    a(f'v_lshl_or_b32 {vr(T1)}, {vr(T2)}, 2, {vr(T1)}')
    a(f'v_lshlrev_b32 {vr(T1)}, 4, {vr(T1)}')
    a(f's_mul_i32 s37, s36, {TILE_B}')
    if KV_OFF: a(f's_add_u32 s37, s37, {KV_OFF}')
    for s in range(3):
        a(f'buffer_store_dwordx4 {vr(X+12+4*s,4)}, {vr(T1)}, s[28:31], s37 offen offset:{1024*s}')
    for i in range(8): a(f'v_cvt_pk_bf16_f32 {vr(ACC+i)}, {vr(ACC+48+2*i)}, {vr(ACC+48+2*i+1)}')
    for i in range(8): a(f'v_cvt_pk_bf16_f32 {vr(ACC+8+i)}, {vr(ACC+64+2*i)}, {vr(ACC+64+2*i+1)}')
    a(f'buffer_store_dwordx4 {vr(ACC,4)}, {vr(T0)}, s[28:31], s37 offen offset:3072')
    a('s_add_u32 s38, s37, 4096')
    a(f'buffer_store_dwordx4 {vr(ACC+4,4)}, {vr(T0)}, s[28:31], s38 offen')
    a(f'v_lshrrev_b32 {vr(T1)}, 5, {vr(LANE)}')
    a(f'v_lshlrev_b32 {vr(T1)}, 8, {vr(T1)}')
    a(f'v_and_b32 {vr(T2)}, 15, {vr(LANE)}')
    a(f'v_lshlrev_b32 {vr(T2)}, 4, {vr(T2)}')
    a(f'v_add_u32 {vr(T1)}, {vr(T1)}, {vr(T2)}')
    a('s_mov_b32 s40, 0x0000ffff\ns_mov_b32 s41, 0x0000ffff')
    a('s_mov_b64 exec, s[40:41]')
    a(f'buffer_store_dwordx4 {vr(ACC+8,4)}, {vr(T1)}, s[28:31], s38 offen offset:1024')
    a(f'buffer_store_dwordx4 {vr(ACC+12,4)}, {vr(T1)}, s[28:31], s38 offen offset:1536')
    a('s_mov_b64 exec, -1')
    a('s_waitcnt vmcnt(0)')
    a('s_add_u32 s17, s17, 8')
    a('s_branch L_k1_tile')
    a('L_k1_end:')
    a('s_endpgm')
    kd(a, 'proj_kernel', 120, 48)

def gen_k3(a):
    B, W, ACC, T0, T1, T2, LANE, TR, P = 0, 24, 32, 80, 81, 82, 83, 84, 88
    a('.p2align 8\n.globl oproj_kernel\n.type oproj_kernel,@function\noproj_kernel:')
    a('s_cmp_ge_u32 s2, 196')
    a('s_cbranch_scc1 L_k3_end')
    a('v_mov_b32 v85, v0')
    a('s_load_dwordx4 s[4:7], s[0:1], 16')
    a('s_load_dwordx2 s[8:9], s[0:1], 40')
    a(f'v_and_b32 {vr(LANE)}, 63, v0')
    a(f'v_lshrrev_b32 {vr(T0)}, 6, v0')
    a('s_nop 0')
    a(f'v_readfirstlane_b32 s14, {vr(T0)}')
    a('s_waitcnt lgkmcnt(0)')
    srd(a, 20, 4, 96*96*2)
    srd(a, 24, 6, X_BYTES)
    srd(a, 28, 8, WS_USED)
    for i in range(3):
        a(f'v_add_u32 {vr(T0)}, {512*i}, v0')
        a(f'v_lshlrev_b32 {vr(32+8*i)}, 4, {vr(T0)}')
        a(f'buffer_load_dwordx4 {vr(36+8*i,4)}, {vr(32+8*i)}, s[20:23], 0 offen')
    a('s_lshl_b32 s15, s2, 3\ns_add_u32 s15, s15, s14')
    a('s_mul_i32 s16, s15, 2341\ns_lshr_b32 s16, s16, 16')
    a('s_mul_i32 s17, s16, 28\ns_sub_u32 s17, s15, s17')
    a('s_lshr_b32 s18, s16, 1\ns_mul_i32 s18, s18, 56\ns_lshl_b32 s19, s17, 1\ns_add_u32 s18, s18, s19\ns_and_b32 s19, s16, 1\ns_add_u32 s18, s18, s19')
    a('s_add_u32 s19, s17, 28\ns_mul_i32 s19, s19, 56\ns_add_u32 s19, s19, s16')
    a(f's_mul_i32 s18, s18, 3072\ns_add_u32 s18, s18, {O_OFF}\ns_mul_i32 s19, s19, 3072\ns_add_u32 s19, s19, {O_OFF}')
    a(f'v_lshlrev_b32 {vr(T0)}, 4, {vr(LANE)}')
    for s in range(3):
        a(f'buffer_load_dwordx4 {vr(B+4*s,4)}, {vr(T0)}, s[28:31], s18 offen offset:{1024*s}')
        a(f'buffer_load_dwordx4 {vr(B+12+4*s,4)}, {vr(T0)}, s[28:31], s19 offen offset:{1024*s}')
    a('s_waitcnt vmcnt(6)')
    for i in range(2):
        a(f'ds_write_b128 {vr(32+8*i)}, {vr(36+8*i,4)}')
    a(f'v_cmp_gt_u32 vcc, {1152-1024}, v85')
    a('s_and_saveexec_b64 s[34:35], vcc')
    a(f'ds_write_b128 {vr(48)}, {vr(52,4)}')
    a('s_mov_b64 exec, s[34:35]')
    a(f'v_lshrrev_b32 {vr(T0)}, 5, {vr(LANE)}')
    a(f'v_lshlrev_b32 {vr(T0)}, 2, {vr(T0)}')
    a(f'v_bfe_u32 {vr(T1)}, {vr(LANE)}, 2, 2')
    a(f'v_add_u32 {vr(T0)}, {vr(T0)}, {vr(T1)}')
    a(f'v_mul_u32_u24 {vr(T0)}, 192, {vr(T0)}')
    a(f'v_bfe_u32 {vr(T1)}, {vr(LANE)}, 4, 1')
    a(f'v_lshlrev_b32 {vr(T1)}, 5, {vr(T1)}')
    a(f'v_and_b32 {vr(T2)}, 3, {vr(LANE)}')
    a(f'v_lshlrev_b32 {vr(T2)}, 3, {vr(T2)}')
    a(f'v_add3_u32 {vr(TR)}, {vr(T0)}, {vr(T1)}, {vr(T2)}')
    a('s_waitcnt lgkmcnt(0)')
    a('s_barrier')
    a('s_waitcnt vmcnt(0)')
    seq = [(d, s, mt) for d in range(2) for s in range(3) for mt in range(3)]
    def rd(n, buf):
        d, s, mt = seq[n]
        off = (48*d + 16*s)*192 + mt*64
        a(f'ds_read_b64_tr_b16 {vr(W+4*buf,2)}, {vr(TR)} offset:{off}')
        a(f'ds_read_b64_tr_b16 {vr(W+4*buf+2,2)}, {vr(TR)} offset:{off+8*192}')
    rd(0, 0)
    for n, (d, s, mt) in enumerate(seq):
        buf = n % 2
        if n+1 < len(seq):
            rd(n+1, 1-buf); a('s_waitcnt lgkmcnt(2)')
        else:
            a('s_waitcnt lgkmcnt(0)')
        c = '0' if n < 3 else vr(ACC+16*mt,16)
        a(f'v_mfma_f32_32x32x16_bf16 {vr(ACC+16*mt,16)}, {vr(W+4*buf,4)}, {vr(B+12*d+4*s,4)}, {c}')
    a('s_nop 15')
    a('s_mul_i32 s16, s16, 896\ns_lshl_b32 s17, s17, 3\ns_add_u32 s16, s16, s17\ns_mul_i32 s16, s16, 192')
    a(f'v_bfe_u32 {vr(T0)}, {vr(LANE)}, 3, 2')
    a(f'v_mul_u32_u24 {vr(T0)}, 224, {vr(T0)}')
    a(f'v_and_b32 {vr(T1)}, 7, {vr(LANE)}')
    a(f'v_add_u32 {vr(T0)}, {vr(T0)}, {vr(T1)}')
    a(f'v_mul_u32_u24 {vr(T0)}, 192, {vr(T0)}')
    a(f'v_lshrrev_b32 {vr(T1)}, 5, {vr(LANE)}')
    a(f'v_lshlrev_b32 {vr(T1)}, 4, {vr(T1)}')
    a(f'v_add_u32 {vr(T0)}, {vr(T0)}, {vr(T1)}')
    for mt in range(3):
        for gp in range(2):
            r0 = ACC + 16*mt + 8*gp
            Pq = B + 4*(2*mt+gp)
            for i in range(4):
                a(f'v_cvt_pk_bf16_f32 {vr(Pq+i)}, {vr(r0+2*i)}, {vr(r0+2*i+1)}')
            a('s_nop 1')
            a(f'v_permlane32_swap_b32 {vr(Pq)}, {vr(Pq+2)}')
            a(f'v_permlane32_swap_b32 {vr(Pq+1)}, {vr(Pq+3)}')
            a('s_nop 1')
            a(f'buffer_store_dwordx4 {vr(Pq,4)}, {vr(T0)}, s[24:27], s16 offen offset:{64*mt + 32*gp}')
    a('s_waitcnt vmcnt(0)')
    a('L_k3_end:')
    a('s_endpgm')
    kd(a, 'oproj_kernel', 96, 48)

def gen():
    assert all((i*2341) >> 16 == i//28 for i in range(1568+64))
    assert all((p*3641) >> 16 == p//18 for p in range(2048))
    A1.OPT.add('zrows')
    att = A1.gen(stamp=False)
    lines = att.split('\n')
    body = [l for l in lines if not l.startswith('; @launch') and 'amdgcn_target' not in l]
    a = Asm()
    a('; @launch kernel=proj_kernel grid=(224,1,1) block=(512,1,1) lds=30720')
    a(f'; @launch kernel=attn_kernel grid=(224,1,1) block=(1024,1,1) lds={A1.LDS_BYTES}')
    a('; @launch kernel=oproj_kernel grid=(196,1,1) block=(512,1,1) lds=18432')
    a('.amdgcn_target "amdgcn-amd-amdhsa--gfx950"')
    a('.text')
    gen_k1(a)
    gen_k3(a)
    return a.text() + '\n'.join(body)

def instrument(txt):
    out = []
    names = {'proj_kernel:': 0, 'attn_kernel:': 1, 'oproj_kernel:': 2}
    cur = None
    lines = txt.split('\n')
    for i, l in enumerate(lines):
        st = l.strip()
        if st in names:
            cur = names[st]
            out.append(l)
            out.append(f'''    s_load_dwordx2 s[90:91], s[0:1], 32
    s_memrealtime s[92:93]
    s_waitcnt lgkmcnt(0)
    s_sub_u32 s90, s90, {512*cur}
    s_subb_u32 s91, s91, 0
    s_not_b32 s94, s92
    v_mov_b32 v1, s94
    v_mov_b32 v2, {8*cur}
    v_cmp_eq_u32 vcc, 0, v0
    s_and_saveexec_b64 s[96:97], vcc
    s_cbranch_execz L_st_{cur}
    global_atomic_umax v2, v1, s[90:91]
L_st_{cur}:
    s_mov_b64 exec, s[96:97]''')
            continue
        if st == 's_endpgm':
            out.append(f'''    s_waitcnt vmcnt(0)
    s_memrealtime s[92:93]
    s_waitcnt lgkmcnt(0)
    s_mov_b64 exec, 1
    v_mov_b32 v1, s92
    v_mov_b32 v2, {8*cur+4}
    global_atomic_umax v2, v1, s[90:91]
    s_waitcnt vmcnt(0)''')
        if '.amdhsa_next_free_sgpr' in st:
            l = '.amdhsa_next_free_sgpr 100'
        out.append(l)
    return '\n'.join(out)

if __name__ == '__main__':
    t = gen()
    if 'inst' in sys.argv: t = instrument(t)
    open(sys.argv[1], 'w').write(t)
```

```python
class Item:
    def __init__(self, kind, text, needs=(), frag=None):
        self.kind, self.text, self.needs, self.frag = kind, text, tuple(needs), frag

def insert_waits(items):
    n = len(items)
    seq = items + items
    issued = 0; last_issue = {}; done_upto = 0
    res = [None]*len(seq)
    for i, it in enumerate(seq):
        if it.needs:
            need_idx = max([last_issue.get(f, 0) for f in it.needs])
            if need_idx > done_upto:
                N = issued - need_idx
                assert N <= 15, N
                res[i] = N
                done_upto = need_idx
        if it.kind == 'lds':
            issued += 1
            last_issue[it.frag] = issued
    lines = []
    for i, it in enumerate(items):
        w = res[n + i]
        if w is not None: lines.append(f's_waitcnt lgkmcnt({w})')
        if it.kind != 'need': lines.append(it.text)
    return lines

def insert_waits_linear(items):
    issued = 0; last_issue = {}; done_upto = 0; lines = []
    for it in items:
        if it.needs:
            need_idx = max([last_issue.get(f, 0) for f in it.needs])
            if need_idx > done_upto:
                N = issued - need_idx
                N = min(N, 15)
                lines.append(f's_waitcnt lgkmcnt({N})')
                done_upto = issued - N
        if it.kind != 'need': lines.append(it.text)
        if it.kind == 'lds':
            issued += 1
            if it.frag: last_issue[it.frag] = issued
    return lines

def interleave(slots, fillers, start=0):
    out = []
    n = len(slots) - start
    fi = 0
    for i, s in enumerate(slots):
        out += s
        if i >= start:
            want = ((i - start + 1) * len(fillers)) // n
            while fi < want:
                out.append(fillers[fi]); fi += 1
    out += fillers[fi:]
    return out

def insert_waits2(items, vm_pre=()):
    issued = 0; last = {}; done = 0
    vis = 0; vlast = {}; vdone = 0
    for nm in vm_pre:
        vis += 1; vlast[nm] = vis
    lines = []
    for it in items:
        vn = getattr(it, 'vneeds', ())
        w = []
        if vn:
            idx = max(vlast[f] for f in vn)
            if idx > vdone:
                N = min(vis - idx, 63); w.append(f'vmcnt({N})'); vdone = vis - N
        if it.needs:
            idx = max([last.get(f, 0) for f in it.needs])
            if idx > done:
                N = min(issued - idx, 15); w.append(f'lgkmcnt({N})'); done = issued - N
        if w: lines.append('s_waitcnt ' + ' '.join(w))
        if it.kind != 'need': lines.append(it.text)
        if it.kind == 'lds':
            issued += 1
            if it.frag: last[it.frag] = issued
        if it.kind == 'vm':
            vis += 1
            if it.frag: vlast[it.frag] = vis
    return lines

def spread(slots, fillers, lo, hi):
    n = hi - lo
    fi = 0
    for i in range(lo, hi):
        want = ((i - lo + 1) * len(fillers)) // n
        while fi < want:
            slots[i].append(fillers[fi]); fi += 1
```

```python
import sys, struct
from asmlib import Asm, vr, sr
from sched import Item, insert_waits, insert_waits_linear, interleave, insert_waits2, spread
import gen_v1

OPT = set()
def f32bits(x): return struct.unpack('<I', struct.pack('<f', x))[0]
QSCALE = 48 ** -0.5 * 1.4426950408889634
X_BYTES = 224*224*96*2
GT_B = 6144; LT_B = 6400
KV_OFF = 0
O_OFF = 56*56*GT_B
FLAG_OFF = O_OFF + 1568*4096
KVF_OFF = FLAG_OFF
NONCE_OFF = KVF_OFF + 224*128
STAT_OFF = NONCE_OFF + 128
WS_USED = STAT_OFF + 224*8*128
WO_L = 16*6400
KNAME = 'standalone__window_attn_cswin__vision_kernel'
GRP_L = 8*LT_B
RING = 24*LT_B
W_L = 14*LT_B
XB_L = W_L + 30720
QB_L = XB_L + 2*6144
CNT_L = RING
TBL_L = RING + 256
LDS_BYTES = 163840
DUMMY_L = 138752 - 5120

QF = [0, 12, 24]; OA = [36, 68, 100]; NM = [132, 148, 164]; SBUF = [180, 196]
K = 212; V0 = 224; V1 = 232; IDX = 240
AK, AVA, AV0, AV1 = 241, 242, 243, 244
XR0, XR1 = 245, 246
LANE, T0, T1, T2, T3, TR, CV, L16, ST = 247, 248, 249, 250, 251, 252, 253, 254, 255
NVGPR = 256
PXA = 132
PW = 220
KS = 219
KS = 236
PT3, CVm, GCm = 239, 234, 235
S_T2X = 99
GK, GC = 237, 238
XG = 204

R_X, R_W, R_WS = 12, 16, 20
R_WO, R_OUT = 76, 80
S_WIN, S_QTR, S_WAVE, S_DIR, S_U0, S_ISB, S_PAR = 24, 25, 26, 27, 28, 29, 30
S_G, S_REG, S_DELTA = 31, 32, 33
S_T, S_T2, S_T3, S_T4 = 34, 35, 36, 37
S_GP, S_GM, S_KVB = 38, 39, 40
S_TILE, S_XCC, S_FAST = 41, 42, 43
S_SC = 44
S_EX = 46
S_Q0, S_B, S_U = 48, 49, 74
S_TM = 50
S_DBG = 68

def mf(d, a_, b, c): return f'v_mfma_f32_32x32x16_bf16 {vr(d,16)}, {vr(a_,4)}, {vr(b,4)}, {c}'
def smf(d, a_, b): return f'v_smfmac_f32_32x32x32_bf16 {vr(d,16)}, {vr(a_,4)}, {vr(b,8)}, {vr(IDX)}'
TRYN = 4
WBG = 3
BPRIO = 2
APRIO = 0
GW = 1
PFN = 2
ARRK = 4
PSLEEP = 2
SPECK = 22
NFULL = 2
TRYN0 = 4
DIST = [2,2,2,3,2,3,2]
NPRE = sum(DIST[:3])

def body(jobs, hooks=None):
    n = len(jobs); items = []; hooks = hooks or {}
    def exps(k, gi):
        s0 = sum(DIST[:gi]); cur = SBUF[k % 2]
        for i in range(s0, s0 + DIST[gi]):
            items.append(Item('exp', f'v_exp_f32 {vr(cur+i)}, {vr(cur+i)}'))
    def off(ji): return jobs[ji % n]['off']*LT_B
    def kread(ji, s): items.append(Item('lds', f'ds_read_b128 {vr(K+4*s,4)}, {vr(AK)} offset:{off(ji)+1024*s}', frag=f'K{s}'))
    def v0read(ji, t): items.append(Item('lds', f'ds_read_b128 {vr(V0+4*t,4)}, {vr(AVA)} offset:{off(ji)+3072+1024*t}', frag=f'V0{t}'))
    def v1read(ji, t): items.append(Item('lds', f'ds_read_b128 {vr(V1+4*t,4)}, {vr((AV0,AV1)[t])} offset:{off(ji)+5120}', frag=f'V1{t}'))
    def same(i, j): return (i // n == j // n) and jobs[i % n]['off'] == jobs[j % n]['off']
    def hook(k, nm):
        for l in hooks.get((k, nm), []): items.append(Item('raw', l))
    kswitched = False
    for k in range(n):
        jn = jobs[(k+1) % n]; jc = jobs[k]
        nxt = SBUF[(k+1) % 2]; cur = SBUF[k % 2]
        qn = jn['q']; qc = jc['q']
        reload_k = not same(k+1, k+2)
        reload_v = not same(k, k+1)
        first_v = (not same(k-1, k)) if k > 0 else True
        items.append(Item('mfma', mf(nxt, K, QF[qn], vr(NM[qn],16)))); hook(k, 'QK1')
        exps(k, 3)
        items.append(Item('mfma', mf(nxt, K+4, QF[qn]+4, vr(nxt,16)))); hook(k, 'QK2')
        if reload_k:
            if k+2 >= n and not kswitched:
                items.append(Item('raw', f'v_add_u32 {vr(AK)}, {sr(S_DELTA)}, {vr(AK)}')); kswitched = True
            kread(k+2, 0); kread(k+2, 1)
        if k == n-1:
            for r in (AVA, AV0, AV1): items.append(Item('raw', f'v_add_u32 {vr(r)}, {sr(S_DELTA)}, {vr(r)}'))
        exps(k, 4)
        items.append(Item('mfma', mf(nxt, K+8, QF[qn]+8, vr(nxt,16))))
        if first_v: items.append(Item('need', '', needs=['V00','V10','V01','V11']))
        hook(k, 'QK3')
        exps(k, 5)
        items.append(Item('mfma', smf(OA[qc], V0, cur))); hook(k, 'PV1')
        if reload_k: kread(k+2, 2)
        if reload_v: v0read(k+1, 0)
        exps(k, 6)
        items.append(Item('mfma', smf(OA[qc]+16, V1, cur))); hook(k, 'PV2')
        if reload_v: v1read(k+1, 0)
        exps(k+1, 0)
        items.append(Item('mfma', smf(OA[qc], V0+4, cur+8))); hook(k, 'PV3')
        if reload_v: v0read(k+1, 1)
        exps(k+1, 1)
        items.append(Item('mfma', smf(OA[qc]+16, V1+4, cur+8)))
        if not same(k+1, k+2): items.append(Item('need', '', needs=['K0','K1','K2']))
        hook(k, 'PV4')
        if reload_v: v1read(k+1, 1)
        exps(k+1, 2)
    return items


S_NQ, S_Q, S_BLK, S_OB, S_NON, S_RP = 88, 89, 90, 91, 92, 98
def L_blk():
    return [f's_add_u32 {sr(S_TILE)}, {sr(S_Q0)}, {sr(S_Q)}',
        f's_add_u32 {sr(S_T)}, {sr(S_U0)}, {sr(S_TILE)}',
        f's_lshr_b32 {sr(S_T2)}, {sr(S_T)}, 1',
        f's_and_b32 {sr(S_T3)}, {sr(S_T)}, 1',
        f's_lshl_b32 {sr(S_T4)}, {sr(S_WIN)}, 1',
        f's_add_u32 {sr(S_T3)}, {sr(S_T3)}, {sr(S_T4)}',
        f's_sub_u32 {sr(S_T4)}, {sr(S_WIN)}, 28',
        f's_cmp_eq_u32 {sr(S_DIR)}, 1',
        f's_cselect_b32 {sr(S_T2)}, {sr(S_T4)}, {sr(S_T2)}',
        f's_cselect_b32 {sr(S_T3)}, {sr(S_T)}, {sr(S_T3)}',
        f's_mul_i32 {sr(S_BLK)}, {sr(S_T3)}, 28',
        f's_add_u32 {sr(S_BLK)}, {sr(S_BLK)}, {sr(S_T2)}',
        f's_mul_i32 {sr(S_OB)}, {sr(S_T3)}, 896',
        f's_lshl_b32 {sr(S_T2)}, {sr(S_T2)}, 3',
        f's_add_u32 {sr(S_OB)}, {sr(S_OB)}, {sr(S_T2)}',
        f's_mul_i32 {sr(S_OB)}, {sr(S_OB)}, 192',
        f's_lshl_b32 {sr(S_BLK)}, {sr(S_BLK)}, 12',
        f's_add_u32 {sr(S_BLK)}, {sr(S_BLK)}, {O_OFF}']
def L_ts(slot):
    if slot == 0: return [f's_sub_u32 {sr(S_Q)}, 1, {sr(S_RP)}']
    if slot == 1: return [f's_lshl_b32 {sr(S_Q)}, {sr(S_RP)}, 1']
    return [f's_sub_u32 {sr(S_Q)}, 2, {sr(S_RP)}']
def L_norm(q, dmap):
    O = OA[q]
    L = [f'v_mov_b32 {vr(T2)}, {vr(O+24)}', 's_nop 1', f'v_permlane32_swap_b32 {vr(O+24)}, {vr(T2)}', 's_nop 1',
         f'v_rcp_f32 {vr(T0)}, {vr(O+24)}', 's_nop 0']
    L += [f'v_pk_mul_f32 {vr(O+2*i,2)}, {vr(O+2*i,2)}, {vr(T0,2)} op_sel_hi:[1,0]' for i in range(12)]
    L += [f'v_cvt_pk_bf16_f32 {vr(dmap(i))}, {vr(O+2*i)}, {vr(O+2*i+1)}' for i in range(12)]
    return L
def L_pre(slot):
    return [f's_mov_b32 {sr(S_BLK)}, s{8+slot}', f's_mov_b32 {sr(S_OB)}, s{84+slot}']
def L_send(q):
    G = NM[q]
    L = [f'v_mov_b32 {vr(G+4*g+3)}, s92' for g in range(4)]
    L += L_norm(q, lambda i: G + 4*(i//3) + (i%3))
    L += [f'buffer_store_dwordx4 {vr(G+4*g,4)}, {vr(L16)}, {sr(R_WS,4)}, {sr(S_BLK)} offen offset:{1024*g}{INSC()}' for g in range(4)]
    return L


S_FB = 96
def L_chk(q):
    O = OA[q]
    L = [f'v_mov_b32 {vr(T2)}, {vr(O+24)}', f'v_mov_b32 {vr(T0)}, 0', f'v_mov_b32 {vr(T1)}, 0', f'v_permlane32_swap_b32 {vr(O+24)}, {vr(T2)}']
    L += [f'v_pk_fma_f32 {vr(T0,2)}, {vr(O+2*i,2)}, 0, {vr(T0,2)} op_sel_hi:[1,0,1]' for i in range(12)]
    L += [f'v_cmp_gt_f32 vcc, 0x71800000, {vr(O+24)}', f'v_add_f32 {vr(T0)}, {vr(T0)}, {vr(T1)}', 's_mov_b64 s[6:7], vcc',
          f'v_cmp_o_f32 vcc, {vr(T0)}, {vr(T0)}', 's_nop 0', 's_and_b64 vcc, vcc, s[6:7]', 's_cmp_eq_u64 vcc, -1']
    return L
def L_sendG(q, G):
    L = [f'v_mov_b32 {vr(G+4*g+3)}, s92' for g in range(4)]
    L += L_norm(q, lambda i: G + 4*(i//3) + (i%3))
    L += [f'buffer_store_dwordx4 {vr(G+4*g,4)}, {vr(L16)}, {sr(R_WS,4)}, {sr(S_BLK)} offen offset:{1024*g}{INSC()}' for g in range(4)]
    return L
def L_fallback(q):
    O = OA[q]; Q = QF[q]; S = 164; M = 180; MN = 181; C = 182; A0 = 183; A1 = 184
    t = f'fb{q}'
    L = [f'v_mov_b32 {vr(O+i)}, 0' for i in range(32)]
    L += [f'v_mov_b32 {vr(M)}, 0xff7fffff']
    L += [f'v_and_b32 {vr(T0)}, 31, {vr(LANE)}', f'v_cmp_eq_u32 vcc, 16, {vr(T0)}', f'v_mov_b32 {vr(T1)}, 0x3f803f80', 's_nop 1']
    L += [f'v_cndmask_b32 {vr(V1+i)}, 0, {vr(T1)}, vcc' for i in range(8)]
    L += [f'v_lshrrev_b32 {vr(A0)}, 5, {vr(LANE)}', f'v_lshlrev_b32 {vr(A0)}, 8, {vr(A0)}', f'v_and_b32 {vr(A1)}, 15, {vr(LANE)}',
          f'v_lshlrev_b32 {vr(A1)}, 4, {vr(A1)}', f'v_add_u32 {vr(A0)}, {vr(A0)}, {vr(A1)}',
          f's_mov_b32 s99, 0', f's_mov_b32 s100, {sr(S_KVB)}', f'L_{t}:',
          f's_add_u32 s101, s100, 4096']
    L += [f'buffer_load_dwordx4 {vr(K+4*i,4)}, {vr(L16)}, {sr(R_WS,4)}, s100 offen offset:{1024*i} sc1' for i in range(3)]
    L += [f'buffer_load_dwordx4 {vr(V0,4)}, {vr(L16)}, {sr(R_WS,4)}, s100 offen offset:3072 sc1',
          f'buffer_load_dwordx4 {vr(V0+4,4)}, {vr(L16)}, {sr(R_WS,4)}, s101 offen sc1',
          's_mov_b32 s6, 0x0000ffff', 's_mov_b32 s7, 0x0000ffff', 's_mov_b64 exec, s[6:7]',
          f'buffer_load_dwordx4 {vr(V1,4)}, {vr(A0)}, {sr(R_WS,4)}, s101 offen offset:1024 sc1',
          f'buffer_load_dwordx4 {vr(V1+4,4)}, {vr(A0)}, {sr(R_WS,4)}, s101 offen offset:1536 sc1',
          's_mov_b64 exec, -1', 's_waitcnt vmcnt(0)',
          mf(S, K, Q, '0'), mf(S, K+4, Q+4, vr(S,16)), mf(S, K+8, Q+8, vr(S,16)), 's_nop 15', 's_nop 3',
          f'v_max3_f32 {vr(MN)}, {vr(S)}, {vr(S+1)}, {vr(S+2)}']
    L += [f'v_max3_f32 {vr(MN)}, {vr(MN)}, {vr(S+i)}, {vr(S+i+1)}' for i in range(3, 15, 2)]
    L += [f'v_max3_f32 {vr(MN)}, {vr(MN)}, {vr(S+15)}, {vr(M)}', f'v_mov_b32 {vr(C)}, {vr(MN)}', 's_nop 1',
          f'v_permlane32_swap_b32 {vr(MN)}, {vr(C)}', 's_nop 1', f'v_max_f32 {vr(MN)}, {vr(MN)}, {vr(C)}',
          f'v_sub_f32 {vr(C)}, {vr(M)}, {vr(MN)}', f'v_exp_f32 {vr(C)}, {vr(C)}', f'v_mov_b32 {vr(M)}, {vr(MN)}']
    L += [f'v_sub_f32 {vr(S+i)}, {vr(S+i)}, {vr(MN)}' for i in range(16)]
    L += [f'v_exp_f32 {vr(S+i)}, {vr(S+i)}' for i in range(16)]
    L += [f'v_mul_f32 {vr(O+i)}, {vr(O+i)}, {vr(C)}' for i in range(32)]
    L += ['s_nop 1', smf(O, V0, S), smf(O+16, V1, S), smf(O, V0+4, S+8), smf(O+16, V1+4, S+8), 's_nop 15', 's_nop 3',
          f's_add_u32 s100, s100, {GT_B}', 's_add_u32 s99, s99, 1', 's_cmp_lt_u32 s99, 56', f's_cbranch_scc1 L_{t}']
    return L

def WTGT(): return 4 if ('wA' in OPT or 'wreg' in OPT) else 8
def INSC(): return ' sc0 sc1' if 'insc01' in OPT else ' sc1'
def KVSC(): return ' sc1' if 'kvsc1' in OPT else ''
def stamp(a, i):
    if 'stamp' in OPT: a(f's_memtime {sr(S_TM+2*i,2)}')
def lstamp(a, lane):
    if 'grp' in OPT:
        a('s_memtime s[72:73]'); a('s_waitcnt lgkmcnt(0)'); a(f'v_writelane_b32 {vr(ST)}, s72, {lane}')
def gstamp(a, base=0):
    if 'grp' in OPT:
        a('s_memtime s[72:73]'); a('s_waitcnt lgkmcnt(0)'); a(f's_sub_u32 {sr(S_T)}, {sr(S_G)}, 1'); a(f's_mov_b32 m0, {sr(S_T)}'); a('s_nop 3'); a(f'v_writelane_b32 {vr(ST)}, s72, m0')

def dma_u(a):
    a(f's_add_u32 {sr(S_T)}, {sr(S_U)}, {sr(S_U0)}')
    a(f's_cmp_ge_u32 {sr(S_T)}, 56')
    a(f's_cselect_b32 {sr(S_T2)}, 56, 0')
    a(f's_sub_u32 {sr(S_T)}, {sr(S_T)}, {sr(S_T2)}')
    a(f's_cmp_ge_u32 {sr(S_U)}, 24')
    a(f's_cselect_b32 {sr(S_T2)}, 24, 0')
    a(f's_sub_u32 {sr(S_T2)}, {sr(S_U)}, {sr(S_T2)}')
    a(f's_cmp_ge_u32 {sr(S_T2)}, 24')
    a(f's_cselect_b32 {sr(S_T3)}, 24, 0')
    a(f's_sub_u32 {sr(S_T2)}, {sr(S_T2)}, {sr(S_T3)}')
    a(f's_mul_i32 {sr(S_T3)}, {sr(S_T)}, {GT_B}')
    a(f's_add_u32 {sr(S_T3)}, {sr(S_T3)}, {sr(S_KVB)}')
    a(f's_mul_i32 m0, {sr(S_T2)}, {LT_B}')
    a('s_nop 0')
    for i in range(4): a(f'buffer_load_dwordx4 {vr(L16)}, {sr(R_WS,4)}, {sr(S_T3)} offen offset:{1024*i} sc1 lds')
    a(f's_add_u32 {sr(S_T3)}, {sr(S_T3)}, 4096')
    a(f's_add_u32 m0, m0, 4096')
    a('s_nop 0')
    for i in range(2): a(f'buffer_load_dwordx4 {vr(L16)}, {sr(R_WS,4)}, {sr(S_T3)} offen offset:{1024*i} sc1 lds')

def w_read(n_buf, ks, b, fid, base=None):
    base = PW if base is None else base
    off = ks*16*320 + b*64
    return [Item('lds', f'ds_read_b64_tr_b16 {vr(base+4*n_buf,2)}, {vr(TR)} offset:{off}'),
            Item('lds', f'ds_read_b64_tr_b16 {vr(base+4*n_buf+2,2)}, {vr(TR)} offset:{off+4*320}', frag=fid)]

def gen_attn(a):
    a(f'.globl {KNAME}\n.p2align 8\n.type {KNAME},@function\n{KNAME}:')
    a('s_cmp_ge_u32 s2, 224')
    a('s_cbranch_scc1 L_end')
    if 'perm' in OPT:
        a('s_mul_i32 s3, s2, 2341'); a('s_lshr_b32 s3, s3, 16')
        a('s_mul_i32 s4, s3, 28'); a('s_sub_u32 s4, s2, s4')
        a('s_lshl_b32 s4, s4, 3'); a('s_add_u32 s2, s4, s3')
    a('s_load_dwordx4 s[4:7], s[0:1], 0')
    a('s_load_dwordx4 s[8:11], s[0:1], 32')
    a('s_load_dwordx4 s[84:87], s[0:1], 16')
    stamp(a, 0)
    if 'stamp' in OPT: a('s_memrealtime s[66:67]')
    a(f'v_and_b32 {vr(LANE)}, 63, v0')
    a(f'v_lshrrev_b32 {vr(T0)}, 6, v0')
    a(f'v_lshlrev_b32 {vr(L16)}, 4, {vr(LANE)}')
    a(f'v_readfirstlane_b32 {sr(S_WAVE)}, {vr(T0)}')
    a(f's_and_b32 {sr(S_T)}, s2, 7')
    a(f's_lshr_b32 {sr(S_T2)}, s2, 3')
    a(f's_mul_i32 {sr(S_WIN)}, {sr(S_T)}, 7')
    a(f's_and_b32 {sr(S_QTR)}, {sr(S_T2)}, 3')
    a(f's_lshr_b32 {sr(S_T2)}, {sr(S_T2)}, 2')
    a(f's_add_u32 {sr(S_WIN)}, {sr(S_WIN)}, {sr(S_T2)}')
    a(f's_mul_i32 {sr(S_U0)}, {sr(S_QTR)}, 14')
    a(f's_cmp_ge_u32 {sr(S_WIN)}, 28')
    a(f's_cselect_b32 {sr(S_DIR)}, 1, 0')
    a(f's_cmp_ge_u32 {sr(S_WAVE)}, 4')
    a(f's_cselect_b32 {sr(S_ISB)}, 1, 0')
    a(f's_mul_i32 {sr(S_Q0)}, {sr(S_WAVE)}, 3')
    a(f's_mov_b32 {sr(S_PAR)}, 0')
    a(f's_sub_u32 {sr(S_B)}, {sr(S_WAVE)}, 4')
    a(f's_cmp_eq_u32 {sr(S_ISB)}, 0')
    a('s_cbranch_scc1 L_roleA')
    a(f's_and_b32 {sr(S_PAR)}, {sr(S_B)}, 1')
    a(f's_lshr_b32 {sr(S_T)}, {sr(S_B)}, 1')
    a(f's_add_u32 {sr(S_Q0)}, {sr(S_T)}, 12')
    a('L_roleA:')
    a(f's_add_u32 {sr(S_RP)}, {sr(S_Q0)}, {sr(S_DIR)}')
    a(f's_and_b32 {sr(S_RP)}, {sr(S_RP)}, 1')
    a(f's_mov_b32 {sr(S_GP)}, {GRP_L}')
    a(f's_mov_b32 {sr(S_GM)}, {-2*GRP_L & 0xffffffff}')
    a(f's_mul_i32 {sr(S_KVB)}, {sr(S_WIN)}, {56*GT_B}')
    a(f'v_lshlrev_b32 {vr(T0)}, 2, {vr(LANE)}')
    a(f'v_mov_b32 {vr(T1)}, 0')
    a(f'ds_write_b32 {vr(T0)}, {vr(T1)} offset:0') if False else None
    a(f'v_add_u32 {vr(T0)}, {CNT_L}, {vr(T0)}')
    a(f'ds_write_b32 {vr(T0)}, {vr(T1)}')
    if 'nopf' not in OPT:
        a(f's_cmp_eq_u32 {sr(S_ISB)}, 1')
        a('s_cbranch_scc0 L_nopf')
        a('s_getpc_b64 s[6:7]') if False else None
        a('s_getpc_b64 s[90:91]')
        a('L_pfpc:')
        a(f's_sub_u32 s90, s90, L_pfpc-{KNAME}')
        a('s_subb_u32 s91, s91, 0')
        a(f'v_lshlrev_b32 {vr(T0)}, 6, {vr(LANE)}')
        a(f's_lshl_b32 {sr(S_T)}, {sr(S_B)}, 12')
        a(f'v_add_u32 {vr(T0)}, {sr(S_T)}, {vr(T0)}')
        for j in range(PFN):
            a(f'v_min_u32 {vr(T1)}, L_end-{KNAME}, {vr(T0)}')
            a(f'global_load_dword {vr(232)}, {vr(T1)}, s[90:91]')
            if j < PFN-1: a(f'v_add_u32 {vr(T0)}, 16384, {vr(T0)}')
        a('L_nopf:')
    a(f's_getreg_b32 {sr(S_XCC)}, hwreg(HW_REG_XCC_ID)')
    a(f's_and_b32 {sr(S_XCC)}, {sr(S_XCC)}, 15')
    for i in range(6):
        a(f'v_add_u32 {vr(T0)}, {64*i}, {vr(LANE)}')
        a(f'v_mul_u32_u24 {vr(T1)}, 5462, {vr(T0)}')
        a(f'v_lshrrev_b32 {vr(T1)}, 16, {vr(T1)}')
        a(f'v_mul_u32_u24 {vr(T2)}, 12, {vr(T1)}')
        a(f'v_sub_u32 {vr(T2)}, {vr(T0)}, {vr(T2)}')
        a(f'v_bfe_u32 {vr(T3)}, {vr(T1)}, 2, 2')
        a(f'v_xor_b32 {vr(T2)}, {vr(T2)}, {vr(T3)}')
        a(f'v_lshrrev_b32 {vr(T3)}, 3, {vr(T1)}')
        a(f'v_mul_u32_u24 {vr(T3)}, 224, {vr(T3)}')
        a(f'v_and_b32 {vr(T1)}, 7, {vr(T1)}')
        a(f'v_add_u32 {vr(T1)}, {vr(T1)}, {vr(T3)}')
        a(f'v_mul_u32_u24 {vr(T1)}, 192, {vr(T1)}')
        a(f'v_lshl_add_u32 {vr(XG+i)}, {vr(T2)}, 4, {vr(T1)}')
    a(f'v_lshlrev_b32 {vr(T0)}, 2, {vr(LANE)}')
    a(f'v_add_u32 {vr(T0)}, {TBL_L}, {vr(T0)}')
    for i in range(6): a(f'ds_write_b32 {vr(T0)}, {vr(XG+i)} offset:{256*i}')
    a('s_waitcnt lgkmcnt(0)')
    a('s_barrier')
    lstamp(a, 13)
    a(f's_mov_b32 {sr(S_DBG)}, s8\ns_mov_b32 {sr(S_DBG+1)}, s9')
    def srd(d, p, size):
        a(f's_mov_b32 s{d}, s{p}\ns_and_b32 s{d+1}, s{p+1}, 0xffff\ns_mov_b32 s{d+2}, {size}\ns_mov_b32 s{d+3}, 0x20000')
    srd(R_X, 4, X_BYTES); srd(R_W, 6, 96*288*2); srd(R_WS, 10, WS_USED); srd(R_WO, 84, 96*96*2); srd(R_OUT, 86, X_BYTES)
    def tile_base():
        a(f's_add_u32 {sr(S_T)}, {sr(S_U0)}, {sr(S_TILE)}')
        a(f's_lshr_b32 {sr(S_T2)}, {sr(S_T)}, 1')
        a(f's_and_b32 {sr(S_T3)}, {sr(S_T)}, 1')
        a(f's_lshl_b32 {sr(S_T4)}, {sr(S_WIN)}, 1')
        a(f's_add_u32 {sr(S_T3)}, {sr(S_T3)}, {sr(S_T4)}')
        a(f's_sub_u32 {sr(S_T4)}, {sr(S_WIN)}, 28')
        a(f's_cmp_eq_u32 {sr(S_DIR)}, 1')
        a(f's_cselect_b32 {sr(S_T2)}, {sr(S_T4)}, {sr(S_T2)}')
        a(f's_cselect_b32 {sr(S_T3)}, {sr(S_T)}, {sr(S_T3)}')
        a(f's_mul_i32 {sr(S_T3)}, {sr(S_T3)}, 896')
        a(f's_lshl_b32 {sr(S_T2)}, {sr(S_T2)}, 3')
        a(f's_add_u32 {sr(S_T3)}, {sr(S_T3)}, {sr(S_T2)}')
        a(f's_mul_i32 {sr(S_T3)}, {sr(S_T3)}, 192')
    CA = CNT_L + 192
    DF = CNT_L + 128
    a(f's_cmp_eq_u32 {sr(S_WAVE)}, 5')
    a('s_cbranch_scc0 L_noreg')
    a(f's_mul_i32 {sr(S_T)}, {sr(S_XCC)}, {sr(S_XCC)}')
    a(f's_lshl_b32 {sr(S_T)}, {sr(S_T)}, 16')
    a(f's_lshl_b32 {sr(S_T2)}, {sr(S_XCC)}, 8')
    a(f's_add_u32 {sr(S_T)}, {sr(S_T)}, {sr(S_T2)}')
    a(f's_add_u32 {sr(S_T)}, {sr(S_T)}, 1')
    a(f's_lshl_b32 {sr(S_T2)}, {sr(S_WIN)}, 2')
    a(f's_add_u32 {sr(S_T2)}, {sr(S_T2)}, 32')
    a(f'v_mov_b32 {vr(T0)}, {sr(S_T2)}')
    a(f'v_mov_b32 {vr(T1)}, {sr(S_T)}')
    a('s_mov_b64 exec, 1')
    a(f'global_atomic_add {vr(T0)}, {vr(T1)}, {sr(S_DBG,2)} sc1')
    a('s_mov_b64 exec, -1')
    a('L_noreg:')
    WCNT, XF = CNT_L + 32, CNT_L + 64
    def spin(addr_imm_or_sgpr, target, tag, sleep=1):
        a(f'v_mov_b32 {vr(T0)}, {addr_imm_or_sgpr}')
        a(f's_mov_b32 {sr(S_T4)}, 0')
        a(f'L_sp{tag}:')
        a(f'ds_read_b32 {vr(T1)}, {vr(T0)}')
        a('s_waitcnt lgkmcnt(0)')
        a(f'v_readfirstlane_b32 {sr(S_T)}, {vr(T1)}')
        a(f's_cmp_eq_u32 {sr(S_T)}, {target}')
        a(f's_cbranch_scc1 L_spd{tag}')
        a(f's_sleep {sleep}')
        a(f's_add_u32 {sr(S_T4)}, {sr(S_T4)}, 1')
        a(f's_cmp_lt_u32 {sr(S_T4)}, 0x100000')
        a(f's_cbranch_scc1 L_sp{tag}')
        a(f'L_spd{tag}:')
    def xissue(tile_lines, lds_lines):
        for l in tile_lines: a(l)
        tile_base()
        for l in lds_lines: a(l)
        a('s_nop 0')
        for i in range(6):
            a(f'buffer_load_dwordx4 {vr(XG+i)}, {sr(R_X,4)}, {sr(S_T3)} offen{"" if "xplain" in OPT else " nt"} lds')
            if i < 5:
                a('s_add_u32 m0, m0, 1024')
                a('s_nop 0')
    if 'wreg' in OPT:
        a(f's_cmp_eq_u32 {sr(S_ISB)}, 1')
        a('s_cbranch_scc1 L_ldB')
        a(f's_mul_i32 {sr(S_SC)}, {sr(S_DIR)}, 96')
        for j in range(8):
            a(f's_add_u32 {sr(S_T)}, {sr(S_WAVE)}, {4*j}')
            a(f's_lshl_b32 {sr(S_T2)}, {sr(S_T)}, 6')
            a(f'v_add_u32 {vr(T0)}, {sr(S_T2)}, {vr(LANE)}')
            a(f'v_mul_u32_u24 {vr(T1)}, 3277, {vr(T0)}')
            a(f'v_lshrrev_b32 {vr(T1)}, 16, {vr(T1)}')
            a(f'v_mul_u32_u24 {vr(T2)}, 20, {vr(T1)}')
            a(f'v_sub_u32 {vr(T2)}, {vr(T0)}, {vr(T2)}')
            a(f'v_mul_u32_u24 {vr(T3)}, 43, {vr(T2)}')
            a(f'v_lshrrev_b32 {vr(T3)}, 8, {vr(T3)}')
            a(f'v_mul_u32_u24 {vr(T3)}, 96, {vr(T3)}')
            a(f'v_lshlrev_b32 {vr(T2)}, 4, {vr(T2)}')
            a(f'v_mul_u32_u24 {vr(T1)}, 576, {vr(T1)}')
            a(f'v_add3_u32 {vr(T1)}, {vr(T1)}, {vr(T2)}, {vr(T3)}')
            a(f'buffer_load_dwordx4 {vr(36+4*j,4)}, {vr(T1)}, {sr(R_W,4)}, {sr(S_SC)} offen')
        a(f's_lshl_b32 {sr(S_T)}, {sr(S_WAVE)}, 10')
        a(f's_add_u32 {sr(S_T)}, {sr(S_T)}, {W_L}')
        a(f'v_add_u32 {vr(T0)}, {sr(S_T)}, {vr(L16)}')
        for j in range(8):
            a(f's_waitcnt vmcnt({7-j})')
            if j == 7:
                a(f's_cmp_ge_u32 {sr(S_WAVE)}, 2'); a('s_cbranch_scc1 L_wr7')
            a(f'ds_write_b128 {vr(T0)}, {vr(36+4*j,4)} offset:{4096*j}')
        a('L_wr7:')
    else:
        if 'wA' in OPT:
            a(f's_cmp_eq_u32 {sr(S_ISB)}, 1')
            a('s_cbranch_scc1 L_ldB')
            a('s_setprio 3')
        a(f's_mul_i32 {sr(S_SC)}, {sr(S_DIR)}, 96')
        a(f's_mov_b32 {sr(S_SC+1)}, {sr(S_WAVE)}')
        a('L_wloop:')
        a(f's_lshl_b32 {sr(S_T2)}, {sr(S_SC+1)}, 6')
        a(f'v_add_u32 {vr(T0)}, {sr(S_T2)}, {vr(LANE)}')
        a(f'v_mul_u32_u24 {vr(T1)}, 3277, {vr(T0)}')
        a(f'v_lshrrev_b32 {vr(T1)}, 16, {vr(T1)}')
        a(f'v_mul_u32_u24 {vr(T2)}, 20, {vr(T1)}')
        a(f'v_sub_u32 {vr(T2)}, {vr(T0)}, {vr(T2)}')
        a(f'v_mul_u32_u24 {vr(T3)}, 43, {vr(T2)}')
        a(f'v_lshrrev_b32 {vr(T3)}, 8, {vr(T3)}')
        a(f'v_mul_u32_u24 {vr(T3)}, 96, {vr(T3)}')
        a(f'v_lshlrev_b32 {vr(T2)}, 4, {vr(T2)}')
        a(f'v_mul_u32_u24 {vr(T1)}, 576, {vr(T1)}')
        a(f'v_add3_u32 {vr(T1)}, {vr(T1)}, {vr(T2)}, {vr(T3)}')
        a(f's_lshl_b32 {sr(S_T2)}, {sr(S_SC+1)}, 10')
        a(f's_add_u32 m0, {sr(S_T2)}, {W_L}')
        a('s_nop 0')
        a(f'buffer_load_dwordx4 {vr(T1)}, {sr(R_W,4)}, {sr(S_SC)} offen lds')
        a(f's_add_u32 {sr(S_SC+1)}, {sr(S_SC+1)}, {4 if "wA" in OPT else 8}')
        a(f's_cmp_lt_u32 {sr(S_SC+1)}, 30')
        a('s_cbranch_scc1 L_wloop')

    lstamp(a, 14)
    a(f's_cmp_eq_u32 {sr(S_ISB)}, 1')
    a('s_cbranch_scc1 L_ldB')
    def xa(j): xissue([f's_add_u32 {sr(S_TILE)}, {sr(S_Q0)}, {j}'], [f's_add_u32 {sr(S_T2)}, {sr(S_WAVE)}, {(0,4,10)[j]}', f's_mul_i32 m0, {sr(S_T2)}, {LT_B}'])
    def wsigA():
        a(f'v_mov_b32 {vr(T0)}, {WCNT}')
        a(f'v_mov_b32 {vr(T1)}, 1')
        a('s_mov_b64 exec, 1')
        a(f'ds_add_u32 {vr(T0)}, {vr(T1)}')
        a('s_mov_b64 exec, -1')
    def xfA(j):
        a(f's_add_u32 {sr(S_T)}, {sr(S_Q0)}, {j}')
        a(f's_lshl_b32 {sr(S_T)}, {sr(S_T)}, 2')
        a(f's_add_u32 {sr(S_T)}, {sr(S_T)}, {XF}')
        a(f'v_mov_b32 {vr(T0)}, {sr(S_T)}')
        a(f'v_mov_b32 {vr(T1)}, 1')
        a(f'ds_write_b32 {vr(T0)}, {vr(T1)}')
    xa(0); xa(1)
    a('s_waitcnt vmcnt(12)'); wsigA()
    a('s_waitcnt vmcnt(6)'); xfA(0)
    xa(2)
    a('s_waitcnt vmcnt(6)'); xfA(1)
    a('s_branch L_lddone')
    a('L_ldB:')
    a('s_setprio 2')
    a(f's_mul_i32 s100, {sr(S_B)}, 3')
    a(f's_cmp_eq_u32 {sr(S_PAR)}, 1')
    a('s_cbranch_scc1 L_nox0')
    xissue([f's_mov_b32 {sr(S_TILE)}, {sr(S_Q0)}'], [f's_sub_u32 {sr(S_T2)}, {sr(S_TILE)}, 12', f's_mul_i32 {sr(S_T2)}, {sr(S_T2)}, 6144', f's_add_u32 m0, {sr(S_T2)}, {XB_L}'])
    a('L_nox0:')
    def xflag(tile_lines):
        for l in tile_lines: a(l)
        a(f's_lshl_b32 {sr(S_T)}, {sr(S_T)}, 2')
        a(f's_add_u32 {sr(S_T)}, {sr(S_T)}, {XF}')
        a(f'v_mov_b32 {vr(T0)}, {sr(S_T)}')
        a(f'v_mov_b32 {vr(T1)}, 1')
        a(f'ds_write_b32 {vr(T0)}, {vr(T1)}')
    def wsig():
        a(f'v_mov_b32 {vr(T0)}, {WCNT}')
        a(f'v_mov_b32 {vr(T1)}, 1')
        a('s_mov_b64 exec, 1')
        a(f'ds_add_u32 {vr(T0)}, {vr(T1)}')
        a('s_mov_b64 exec, -1')
    a(f's_cmp_eq_u32 {sr(S_PAR)}, 1')
    a('s_cbranch_scc1 L_ldB1')
    a('s_waitcnt vmcnt(6)'); wsig()
    a('s_waitcnt vmcnt(0)')
    xflag([f's_mov_b32 {sr(S_T)}, {sr(S_Q0)}'])
    a('s_branch L_lddone')
    a('L_ldB1:')
    a('s_waitcnt vmcnt(0)'); wsig()
    a(f's_cmp_eq_u32 s2, 0')
    a('s_cbranch_scc0 L_non')
    a(f's_cmp_eq_u32 {sr(S_WAVE)}, 7')
    a('s_cbranch_scc0 L_non')
    a(f'v_mov_b32 {vr(T0)}, {NONCE_OFF}')
    a(f'buffer_load_dword {vr(T2)}, {vr(T0)}, {sr(R_WS,4)}, 0 offen sc1')
    a('s_waitcnt vmcnt(0)')
    a(f'v_add_u32 {vr(T2)}, 2, {vr(T2)}')
    a(f'v_or_b32 {vr(T2)}, 1, {vr(T2)}')
    a(f'v_mov_b32 {vr(T1)}, 4')
    a('s_mov_b64 exec, 1')
    a(f'global_store_dword {vr(T1)}, {vr(T2)}, {sr(S_DBG,2)} sc1')
    a(f'buffer_store_dword {vr(T2)}, {vr(T0)}, {sr(R_WS,4)}, 0 offen sc1')
    a('s_mov_b64 exec, -1')
    a('L_non:')
    if 'nowarm' not in OPT:
        a(f'v_lshlrev_b32 {vr(T0)}, 16, {vr(LANE)}')
        a(f'v_cmp_gt_u32 vcc, 7, {vr(LANE)}')
        a(f's_and_saveexec_b64 {sr(S_EX,2)}, vcc')
        a(f'buffer_load_dword {vr(232)}, {vr(T0)}, {sr(R_WS,4)}, {sr(S_KVB)} offen')
        a(f'v_lshlrev_b32 {vr(T0)}, 20, {vr(LANE)}')
        a(f's_mov_b32 {sr(S_T)}, {O_OFF}')
        a(f'buffer_load_dword {vr(233)}, {vr(T0)}, {sr(R_WS,4)}, {sr(S_T)} offen')
        a(f'v_lshlrev_b32 {vr(T0)}, 21, {vr(LANE)}')
        a(f'buffer_load_dword {vr(234)}, {vr(T0)}, {sr(R_OUT,4)}, 0 offen')
        a(f's_mov_b64 exec, {sr(S_EX,2)}')
    a('L_lddone:')
    lstamp(a, 15)
    def pads(first_sgpr, limit):
        a(f'v_and_b32 {vr(T0)}, 15, {vr(LANE)}')
        a(f'v_cmp_eq_u32 vcc, 0, {vr(T0)}')
        a(f'v_mov_b32 {vr(T1)}, 0x3f803f80')
        a(f'v_lshlrev_b32 {vr(T0)}, 4, {vr(T0)}')
        a('s_nop 0')
        for i in range(4): a(f'v_cndmask_b32 {vr(NM[2]+12+i)}, 0, {vr(T1)}, vcc')
        a(f'v_lshrrev_b32 {vr(T1)}, 4, {vr(LANE)}')
        a(f'v_add_u32 {vr(T1)}, {sr(first_sgpr)}, {vr(T1)}')
        a(f'v_mul_u32_u24 {vr(T2)}, {LT_B}, {vr(T1)}')
        a(f'v_add_u32 {vr(T2)}, {vr(T2)}, {vr(T0)}')
        a(f'v_cmp_gt_u32 vcc, {limit}, {vr(T1)}')
        a(f's_and_saveexec_b64 {sr(S_EX,2)}, vcc')
        lab = a.label('L_pad')
        a(f's_cbranch_execz {lab}')
        a(f'ds_write_b128 {vr(T2)}, {vr(NM[2]+12,4)} offset:{GT_B}')
        a(f'{lab}:')
        a(f's_mov_b64 exec, {sr(S_EX,2)}')
    a(f's_lshl_b32 {sr(S_T)}, {sr(S_WAVE)}, 2')
    pads(S_T, 14)
    a(f'v_lshrrev_b32 {vr(T0)}, 5, {vr(LANE)}')
    a(f'v_lshlrev_b32 {vr(T0)}, 3, {vr(T0)}')
    a(f'v_bfe_u32 {vr(T1)}, {vr(LANE)}, 2, 2')
    a(f'v_add_u32 {vr(T0)}, {vr(T0)}, {vr(T1)}')
    a(f'v_mul_u32_u24 {vr(T0)}, 320, {vr(T0)}')
    a(f'v_bfe_u32 {vr(T1)}, {vr(LANE)}, 4, 1')
    a(f'v_lshlrev_b32 {vr(T1)}, 5, {vr(T1)}')
    a(f'v_and_b32 {vr(T2)}, 3, {vr(LANE)}')
    a(f'v_lshlrev_b32 {vr(T2)}, 3, {vr(T2)}')
    a(f'v_add3_u32 {vr(TR)}, {vr(T0)}, {vr(T1)}, {vr(T2)}')
    a(f'v_add_u32 {vr(TR)}, {W_L}, {vr(TR)}')
    a(f's_sub_u32 {sr(S_T2)}, {sr(S_Q0)}, 4')
    a(f's_mul_i32 {sr(S_T2)}, {sr(S_T2)}, {LT_B}')
    a(f's_sub_u32 {sr(S_T)}, {sr(S_Q0)}, 12')
    a(f's_mul_i32 {sr(S_T)}, {sr(S_T)}, 6144')
    a(f's_add_u32 {sr(S_T)}, {sr(S_T)}, {XB_L}')
    a(f's_mul_i32 {sr(S_T3)}, {sr(S_WAVE)}, {LT_B}')
    a(f's_cmp_eq_u32 {sr(S_ISB)}, 1')
    a(f's_cselect_b32 {sr(S_T)}, {sr(S_T)}, {sr(S_T3)}')
    a(f'v_and_b32 {vr(T0)}, 31, {vr(LANE)}')
    a(f'v_mul_u32_u24 {vr(T1)}, 192, {vr(T0)}')
    a(f'v_add_u32 {vr(T1)}, {sr(S_T)}, {vr(T1)}')
    a(f'v_bfe_u32 {vr(T2)}, {vr(LANE)}, 2, 2')
    a(f'v_lshrrev_b32 {vr(T3)}, 5, {vr(LANE)}')
    a(f'v_xor_b32 {vr(T0)}, {vr(T3)}, {vr(T2)}')
    a(f'v_lshl_add_u32 {vr(XR0)}, {vr(T0)}, 4, {vr(T1)}')
    a(f'v_xor_b32 {vr(T0)}, 2, {vr(T0)}')
    a(f'v_lshl_add_u32 {vr(XR1)}, {vr(T0)}, 4, {vr(T1)}')
    a(f'v_lshrrev_b32 {vr(T0)}, 5, {vr(LANE)}')
    a(f'v_lshlrev_b32 {vr(T0)}, 8, {vr(T0)}')
    a(f'v_and_b32 {vr(T1)}, 15, {vr(LANE)}')
    a(f'v_lshlrev_b32 {vr(T1)}, 4, {vr(T1)}')
    a(f'v_add3_u32 {vr(CV)}, {vr(T0)}, {vr(T1)}, {sr(S_T2)}')
    a(f'v_and_b32 {vr(T0)}, 0x33, {vr(LANE)}')
    a(f'v_bfe_u32 {vr(T1)}, {vr(LANE)}, 2, 1')
    a(f'v_lshl_or_b32 {vr(T0)}, {vr(T1)}, 3, {vr(T0)}')
    a(f'v_bfe_u32 {vr(T1)}, {vr(LANE)}, 3, 1')
    a(f'v_lshl_or_b32 {vr(T0)}, {vr(T1)}, 2, {vr(T0)}')
    a(f'v_lshlrev_b32 {vr(T0)}, 4, {vr(T0)}')
    a(f'v_add_u32 {vr(KS)}, {sr(S_T2)}, {vr(T0)}')
    a(f'v_add_u32 {vr(T3)}, {sr(S_T2)}, {vr(L16)}')
    a(f's_mov_b32 {sr(S_SC)}, {f32bits(QSCALE)}\ns_mov_b32 {sr(S_SC+1)}, {f32bits(QSCALE)}')
    a(f's_mov_b32 {sr(S_EX)}, 0x0000ffff\ns_mov_b32 {sr(S_EX+1)}, 0x0000ffff')
    a(f's_add_u32 s96, {sr(S_U0)}, {sr(S_Q0)}')
    a(f's_mul_i32 s96, s96, {GT_B}')
    a(f's_add_u32 s96, s96, {sr(S_KVB)}')
    a(f'v_subrev_u32 {vr(GK)}, {sr(S_T2)}, {vr(KS)}')
    a(f'v_subrev_u32 {vr(GC)}, {sr(S_T2)}, {vr(CV)}')
    a(f's_mov_b32 {sr(S_T2X)}, {sr(S_T2)}')
    a(f'v_bfe_u32 {vr(T0)}, {vr(LANE)}, 4, 1')
    a(f'v_lshlrev_b32 {vr(T0)}, 9, {vr(T0)}')
    a(f'v_add_u32 {vr(GCm)}, {vr(T0)}, {vr(GC)}')
    a(f'v_add_u32 {vr(CVm)}, {vr(T0)}, {vr(CV)}')
    a(f's_cmp_eq_u32 {sr(S_ISB)}, 1')
    a('s_cbranch_scc1 L_p1B')
    def zero_O():
        for i in range(4): a(f'v_mov_b32 {vr(V0+i)}, 0')
        a('s_nop 1')
        for i in range(6): a(mf(36+16*i, V0, V0, '0'))
    def setup_addr():
        a(f'v_mov_b32 {vr(IDX)}, 0xdddddddd')
        a(f's_mul_i32 {sr(S_T)}, {sr(S_PAR)}, {LT_B}')
        a(f'v_add_u32 {vr(AK)}, {sr(S_T)}, {vr(L16)}')
        a(f'v_add_u32 {vr(AVA)}, {sr(S_T)}, {vr(L16)}')
        a(f'v_lshrrev_b32 {vr(T1)}, 5, {vr(LANE)}')
        a(f'v_lshlrev_b32 {vr(T1)}, 8, {vr(T1)}')
        a(f'v_and_b32 {vr(T2)}, 15, {vr(LANE)}')
        a(f'v_lshlrev_b32 {vr(T3)}, 4, {vr(T2)}')
        a(f'v_add_u32 {vr(T1)}, {vr(T1)}, {vr(T3)}')
        a(f'v_add_u32 {vr(T3)}, -4, {vr(T2)}')
        a(f'v_cmp_gt_u32 vcc, 8, {vr(T3)}')
        a(f'v_mov_b32 {vr(T3)}, {1024+16}')
        a(f'v_mov_b32 {vr(T0)}, {1024+64}')
        a(f'v_cndmask_b32 {vr(T3)}, {vr(T3)}, {vr(T0)}, vcc')
        a(f'v_cmp_eq_u32 vcc, 0, {vr(T2)}')
        a(f'v_mov_b32 {vr(T0)}, 1024')
        a('s_nop 0')
        a(f'v_cndmask_b32 {vr(T3)}, {vr(T3)}, {vr(T0)}, vcc')
        a(f'v_and_b32 {vr(T0)}, 16, {vr(LANE)}')
        a(f'v_cmp_eq_u32 vcc, 0, {vr(T0)}')
        a(f'v_add_u32 {vr(T2)}, 512, {vr(T1)}')
        a('s_nop 0')
        a(f'v_cndmask_b32 {vr(AV0)}, {vr(T3)}, {vr(T1)}, vcc')
        a(f'v_cndmask_b32 {vr(AV1)}, {vr(T3)}, {vr(T2)}, vcc')
        a(f'v_add_u32 {vr(AV0)}, {sr(S_T)}, {vr(AV0)}')
        a(f'v_add_u32 {vr(AV1)}, {sr(S_T)}, {vr(AV1)}')
    def epi_addr():
        WT0, WT1, OL = XR1, TR, CV
        a(f'v_lshrrev_b32 {vr(T0)}, 5, {vr(LANE)}')
        a(f'v_lshlrev_b32 {vr(T0)}, 2, {vr(T0)}')
        a(f'v_bfe_u32 {vr(T1)}, {vr(LANE)}, 2, 2')
        a(f'v_add_u32 {vr(T0)}, {vr(T0)}, {vr(T1)}')
        a(f'v_mul_u32_u24 {vr(T0)}, 192, {vr(T0)}')
        a(f'v_bfe_u32 {vr(T1)}, {vr(LANE)}, 4, 1')
        a(f'v_lshlrev_b32 {vr(T1)}, 5, {vr(T1)}')
        a(f'v_and_b32 {vr(T2)}, 3, {vr(LANE)}')
        a(f'v_lshlrev_b32 {vr(T2)}, 3, {vr(T2)}')
        a(f'v_add3_u32 {vr(T0)}, {vr(T0)}, {vr(T1)}, {vr(T2)}')
        a(f's_mul_i32 {sr(S_T)}, {sr(S_DIR)}, {48*192}')
        a(f's_add_u32 {sr(S_T2)}, {sr(S_T)}, {WO_L}')
        a(f'v_add_u32 {vr(WT0)}, {sr(S_T2)}, {vr(T0)}')
        a(f's_sub_u32 {sr(S_T2)}, {WO_L + 48*192}, {sr(S_T)}')
        a(f'v_add_u32 {vr(WT1)}, {sr(S_T2)}, {vr(T0)}')
        a(f'v_bfe_u32 {vr(T0)}, {vr(LANE)}, 3, 2')
        a(f'v_mul_u32_u24 {vr(T0)}, 224, {vr(T0)}')
        a(f'v_and_b32 {vr(T1)}, 7, {vr(LANE)}')
        a(f'v_add_u32 {vr(T0)}, {vr(T0)}, {vr(T1)}')
        a(f'v_mul_u32_u24 {vr(T0)}, 192, {vr(T0)}')
        a(f'v_lshrrev_b32 {vr(T1)}, 5, {vr(LANE)}')
        a(f'v_lshlrev_b32 {vr(T1)}, 4, {vr(T1)}')
        a(f'v_add_u32 {vr(OL)}, {vr(T0)}, {vr(T1)}')
    def standin(q, S):
        a(mf(S, K, QF[q], '0')); a(mf(S, K+4, QF[q]+4, vr(S,16))); a(mf(S, K+8, QF[q]+8, vr(S,16)))
    def standin2(q, S):
        a(f'v_max3_f32 {vr(T1)}, {vr(S)}, {vr(S+1)}, {vr(S+2)}')
        for i in range(3, 15, 2): a(f'v_max3_f32 {vr(T1)}, {vr(T1)}, {vr(S+i)}, {vr(S+i+1)}')
        a(f'v_max_f32 {vr(T1)}, {vr(T1)}, {vr(S+15)}')
        a(f'v_mov_b32 {vr(T2)}, {vr(T1)}')
        a('s_nop 1')
        a(f'v_permlane32_swap_b32 {vr(T1)}, {vr(T2)}')
        a('s_nop 1')
        a(f'v_max_f32 {vr(T1)}, {vr(T1)}, {vr(T2)}')
        for i in range(16): a(f'v_sub_f32 {vr(NM[q]+i)}, 0, {vr(T1)}')
    setup_addr()
    a('s_waitcnt lgkmcnt(0)')
    spin(WCNT, 8, 'wA')
    lstamp(a, 16)
    stamp(a, 1)
    PXb = [132, 156]
    AQb = [36, 68]
    WR, NW = 180, 8
    FL = 224
    a(f's_lshl_b32 {sr(S_T)}, {sr(S_Q0)}, 2')
    a(f's_add_u32 {sr(S_T2)}, {sr(S_T)}, {XF}')
    a(f'v_mov_b32 {vr(FL)}, {sr(S_T2)}')
    a(f's_add_u32 {sr(S_T2)}, {sr(S_T)}, {CA}')
    a(f'v_mov_b32 {vr(FL+1)}, {sr(S_T2)}')
    a(f'v_mov_b32 {vr(FL+2)}, 1')
    def R(t): return Item('raw', t)
    slowpaths = []
    XOFF = (0, 4*LT_B, 10*LT_B)
    def xreads(t):
        n = Item('need', ''); n.vneeds = [f'X{t}']
        L = [n, Item('lds', f'ds_write_b32 {vr(FL)}, {vr(FL+2)} offset:{4*t}')]
        if 'grp' in OPT: L += [R('s_memtime s[72:73]'), R('s_waitcnt lgkmcnt(0)'), R(f'v_writelane_b32 {vr(ST)}, s72, {10+t}')]
        for ks in range(6):
            L.append(Item('lds', f'ds_read_b128 {vr(PXb[t%2]+4*ks,4)}, {vr((XR0,XR1)[ks&1])} offset:{XOFF[t] + 64*(ks>>1)}', frag=f'X{t}{ks}'))
        L.append(Item('lds', f'ds_write_b32 {vr(FL+1)}, {vr(FL+2)} offset:{4*t}'))
        return L
    def qpost(t):
        AQ = AQb[t % 2]; d0 = (1,0,2)[t]; d1 = (0,2,1)[t]
        L = [R(f'v_pk_mul_f32 {vr(AQ+2*i,2)}, {vr(AQ+2*i,2)}, {sr(S_SC,2)}') for i in range(12)]
        Q = [R(f's_cmp_eq_u32 {sr(S_RP)}, 0'), R(f's_cbranch_scc0 L_qa{t}')]
        Q += [R(f'v_cvt_pk_bf16_f32 {vr(QF[d0]+i)}, {vr(AQ+2*i)}, {vr(AQ+2*i+1)}') for i in range(12)]
        Q += [R(f's_branch L_qb{t}'), R(f'L_qa{t}:')]
        Q += [R(f'v_cvt_pk_bf16_f32 {vr(QF[d1]+i)}, {vr(AQ+2*i)}, {vr(AQ+2*i+1)}') for i in range(12)]
        Q += [R(f'L_qb{t}:')]
        return L, Q
    frags = []
    for t in range(3): frags += [(t, ks, b) for ks in range(6) for b in (0, 1)]
    D = NW - 1
    pre = xreads(0)
    for n in range(D): pre += w_read(n % NW, frags[n][1], frags[n][2], f'W{n}', WR)
    slots = []
    for n, (t, ks, b) in enumerate(frags):
        sl = [Item('need', '', needs=[f'W{n}', f'X{t}{ks}'])]
        d = AQb[t % 2] + 16*b
        sl.append(Item('mfma', mf(d, WR+4*(n % NW), PXb[t%2] + 4*ks, '0' if ks == 0 else vr(d,16))))
        if n + D < len(frags): sl += w_read((n+D) % NW, frags[n+D][1], frags[n+D][2], f'W{n+D}', WR)
        slots.append(sl)
    for t in range(3):
        base = 12*t
        if t > 0:
            L, Q = qpost(t-1)
            spread(slots, L, base+2, base+9)
            slots[base+10] += Q
        if t < 2: slots[base+7] += xreads(t+1)
    its = pre
    for sl in slots: its += sl
    its.append(R('s_nop 15'))
    L, Q = qpost(2); its += L + Q
    for l in insert_waits2(its, vm_pre=['X0', 'X1'] + ['X2']*6): a(l)
    a(f's_lshl_b32 {sr(S_T2)}, {sr(S_Q0)}, 2')
    a(f's_add_u32 {sr(S_T2)}, {sr(S_T2)}, {DF}')
    spin(sr(S_T2), 1, 'dfA')
    a(f's_mul_i32 {sr(S_T)}, {sr(S_WAVE)}, {LT_B}')
    a(f'v_add_u32 {vr(T0)}, {sr(S_T)}, {vr(L16)}')
    for s_ in range(3): a(f'ds_read_b128 {vr(K+4*s_,4)}, {vr(T0)} offset:{1024*s_}')
    a('s_waitcnt lgkmcnt(0)')
    for q in range(3):
        S = NM[q]
        a(mf(S, K, QF[q], '0')); a(mf(S, K+4, QF[q]+4, vr(S,16))); a(mf(S, K+8, QF[q]+8, vr(S,16)))
    lstamp(a, 17)
    zero_O()
    epi_addr()
    for sl in range(3):
        for l in L_ts(sl) + L_blk(): a(l)
        a(f's_mov_b32 s{8+sl}, {sr(S_BLK)}')
        a(f's_mov_b32 s{84+sl}, {sr(S_OB)}')
    standin2(0, NM[0]); standin2(1, NM[1]); standin2(2, NM[2])
    a(f'v_mov_b32 {vr(T0)}, 4')
    a(f'global_load_dword {vr(XR0)}, {vr(T0)}, {sr(S_DBG,2)} sc1')
    a('s_waitcnt lgkmcnt(0)')
    a('s_barrier')
    stamp(a, 2)
    a('s_branch L_Amain')
    for t in slowpaths:
        a(f'L_xslow{t}:')
        a(f's_mov_b32 {sr(S_T4)}, 0')
        a(f'L_xs{t}:')
        a(f'ds_read_b32 {vr(T1)}, {vr(T0)}')
        a('s_waitcnt lgkmcnt(0)')
        a(f'v_readfirstlane_b32 {sr(S_T)}, {vr(T1)}')
        a(f's_cmp_eq_u32 {sr(S_T)}, 1')
        a(f's_cbranch_scc1 L_xd{t}')
        a('s_sleep 1')
        a(f's_add_u32 {sr(S_T4)}, {sr(S_T4)}, 1')
        a(f's_cmp_lt_u32 {sr(S_T4)}, 0x100000')
        a(f's_cbranch_scc1 L_xs{t}')
        a(f's_branch L_xd{t}')
    a('L_p1B:')
    spin(WCNT, WTGT(), 'wB')
    a(f's_lshl_b32 {sr(S_T2)}, {sr(S_Q0)}, 2')
    a(f's_add_u32 {sr(S_T2)}, {sr(S_T2)}, {XF}')
    spin(sr(S_T2), 1, 'xB')
    stamp(a, 1)
    lstamp(a, 8)
    PXB = 132; PB = 68
    for ks in range(6): a(f'ds_read_b128 {vr(PXB+4*ks,4)}, {vr((XR0,XR1)[ks&1])} offset:{64*(ks>>1)}')
    def seqP(frags, a_is_w, PBx, PXx):
        its = []
        for n in range(7):
            ks, b = frags[n]; its += w_read(n % 8, ks, b, f'W{n}', 180)
        for n, (ks, b) in enumerate(frags):
            its.append(Item('need', '', needs=[f'W{n}']))
            bi = sorted(set(x[1] for x in frags)).index(b)
            d = PBx + 16*bi
            c = '0' if ks == 0 else vr(d,16)
            its.append(Item('mfma', mf(d, 180+4*(n%8), PXx+4*ks, c) if a_is_w else mf(d, PXx+4*ks, 180+4*(n%8), c)))
            if n+7 < len(frags):
                k2, b2 = frags[n+7]; its += w_read((n+7) % 8, k2, b2, f'W{n+7}', 180)
        return insert_waits_linear(its)
    a(f's_cmp_eq_u32 {sr(S_PAR)}, 1')
    a('s_cbranch_scc1 L_pp_v')
    for l in seqP([(ks, b) for ks in range(6) for b in (0, 1, 2)], True, PB, PXB): a(l)
    a('s_nop 15')
    for i in range(12): a(f'v_pk_mul_f32 {vr(PB+2*i,2)}, {vr(PB+2*i,2)}, {sr(S_SC,2)}')
    for i in range(12): a(f'v_cvt_pk_bf16_f32 {vr(156+i)}, {vr(PB+2*i)}, {vr(PB+2*i+1)}')
    for i in range(12): a(f'v_cvt_pk_bf16_f32 {vr(168+i)}, {vr(PB+24+2*i)}, {vr(PB+24+2*i+1)}')
    a(f's_sub_u32 {sr(S_T)}, {sr(S_Q0)}, 12')
    a(f's_mul_i32 {sr(S_T)}, {sr(S_T)}, 3072')
    a(f's_add_u32 {sr(S_T)}, {sr(S_T)}, {QB_L}')
    a(f'v_add_u32 {vr(T0)}, {sr(S_T)}, {vr(L16)}')
    for s_ in range(3): a(f'ds_write_b128 {vr(T0)}, {vr(156+4*s_,4)} offset:{1024*s_}')
    for s_ in range(3): a(f'ds_write_b128 {vr(KS)}, {vr(168+4*s_,4)} offset:{1024*s_}')
    for s_ in range(3): a(f'buffer_store_dwordx4 {vr(168+4*s_,4)}, {vr(GK)}, {sr(R_WS,4)}, s96 offen offset:{1024*s_}{KVSC()}')
    a('s_branch L_pp_end')
    a('L_pp_v:')
    def vout(P, lds_t3, lds_cv, lds_off, gs):
        a(f'ds_write_b128 {vr(lds_t3)}, {vr(P,4)} offset:{lds_off+3072}')
        a(f'ds_write_b128 {vr(lds_t3)}, {vr(P+4,4)} offset:{lds_off+4096}')
        a(f's_add_u32 s97, {gs}, 3072')
        a(f'buffer_store_dwordx4 {vr(P,4)}, {vr(L16)}, {sr(R_WS,4)}, s97 offen{KVSC()}')
        a(f'buffer_store_dwordx4 {vr(P+4,4)}, {vr(L16)}, {sr(R_WS,4)}, s97 offen offset:1024{KVSC()}')
        a(f's_mov_b64 exec, {sr(S_EX,2)}')
        a(f'ds_write_b128 {vr(lds_cv)}, {vr(P+8,4)} offset:{lds_off+5120}')
        a(f'ds_write_b128 {vr(lds_cv)}, {vr(P+12,4)} offset:{lds_off+5632}')
        a(f'buffer_store_dwordx4 {vr(P+8,4)}, {vr(GC)}, {sr(R_WS,4)}, s97 offen offset:2048{KVSC()}')
        a(f'buffer_store_dwordx4 {vr(P+12,4)}, {vr(GC)}, {sr(R_WS,4)}, s97 offen offset:2560{KVSC()}')
        a('s_mov_b64 exec, -1')
    for l in seqP([(ks, b) for ks in range(6) for b in (3, 4)], False, PB, PXB): a(l)
    a('s_nop 15')
    for i in range(16): a(f'v_cvt_pk_bf16_f32 {vr(156+i)}, {vr(PB+2*i)}, {vr(PB+2*i+1)}')
    vout(156, T3, CV, 0, 's96')
    a('L_pp_end:')
    lstamp(a, 9)
    a(f's_sub_u32 {sr(S_T)}, {sr(S_Q0)}, 12')
    a(f's_mul_i32 {sr(S_T)}, {sr(S_T)}, 6144')
    a(f's_add_u32 {sr(S_T)}, {sr(S_T)}, {XB_L}')
    a(f'v_subrev_u32 {vr(228)}, {sr(S_T)}, {vr(XR0)}')
    a(f'v_subrev_u32 {vr(229)}, {sr(S_T)}, {vr(XR1)}')
    a(f'v_mov_b32 {vr(226)}, {vr(GK)}')
    a(f'v_mov_b32 {vr(227)}, {vr(GCm)}')
    a(f's_mov_b32 {sr(S_TILE)}, 0')
    a('L_kv:')
    a(f's_add_u32 s101, s100, {sr(S_TILE)}')
    a(f's_lshl_b32 {sr(S_T2)}, s101, 2')
    a(f's_add_u32 {sr(S_T2)}, {sr(S_T2)}, {XF}')
    spin(sr(S_T2), 1, 'xK')
    a(f's_mul_i32 {sr(S_T)}, {sr(S_TILE)}, 4')
    a(f's_cmp_eq_u32 {sr(S_TILE)}, 2')
    a(f's_cselect_b32 {sr(S_T)}, 10, {sr(S_T)}')
    a(f's_add_u32 {sr(S_T)}, {sr(S_T)}, {sr(S_B)}')
    a(f's_mul_i32 s97, {sr(S_T)}, {LT_B}')
    a(f'v_add_u32 {vr(230)}, s97, {vr(228)}')
    a(f'v_add_u32 {vr(231)}, s97, {vr(229)}')
    PXB = 132
    for ks in range(6): a(f'ds_read_b128 {vr(PXB+4*ks,4)}, {vr((230,231)[ks&1])} offset:{64*(ks>>1)}')
    fr = [(ks, b) for ks in range(6) for b in (1, 2)] + [(ks, b) for ks in range(6) for b in (3, 4)]
    accb = {1: 68, 2: 84, 3: 100, 4: 116}
    its = []
    for n in range(7): its += w_read(n % 8, fr[n][0], fr[n][1], f'W{n}', 180)
    for n, (ks, b) in enumerate(fr):
        its.append(Item('need', '', needs=[f'W{n}']))
        d = accb[b]; c = '0' if ks == 0 else vr(d,16)
        its.append(Item('mfma', mf(d, 180+4*(n%8), PXB+4*ks, c) if b < 3 else mf(d, PXB+4*ks, 180+4*(n%8), c)))
        if n+7 < len(fr): its += w_read((n+7) % 8, fr[n+7][0], fr[n+7][1], f'W{n+7}', 180)
        if n >= 14 and n < 20:
            j = n - 14
            for i in (2*j, 2*j+1):
                src = 68+8+2*i if i < 4 else 84+2*(i-4)
                its.append(Item('raw', f'v_cvt_pk_bf16_f32 {vr(156+i)}, {vr(src)}, {vr(src+1)}'))
    for l in insert_waits_linear(its): a(l)
    a(f's_lshl_b32 {sr(S_T2)}, s101, 2')
    a(f's_add_u32 {sr(S_T2)}, {sr(S_T2)}, {CA}')
    spin(sr(S_T2), 1, 'cA')
    a(f'v_add_u32 {vr(230)}, s97, {vr(226)}')
    for s_ in range(3): a(f'ds_write_b128 {vr(230)}, {vr(156+4*s_,4)} offset:{1024*s_}')
    a(f's_lshl_b32 {sr(S_T2)}, s101, 2')
    a(f's_add_u32 {sr(S_T2)}, {sr(S_T2)}, {DF}')
    a(f'v_mov_b32 {vr(T0)}, {sr(S_T2)}')
    a(f'v_mov_b32 {vr(T1)}, 1')
    a(f'ds_write_b32 {vr(T0)}, {vr(T1)}')
    a(f's_add_u32 {sr(S_T3)}, s101, {sr(S_U0)}')
    a(f's_mul_i32 {sr(S_T3)}, {sr(S_T3)}, {GT_B}')
    a(f's_add_u32 {sr(S_T3)}, {sr(S_T3)}, {sr(S_KVB)}')
    for s_ in range(3): a(f'buffer_store_dwordx4 {vr(156+4*s_,4)}, {vr(226)}, {sr(R_WS,4)}, {sr(S_T3)} offen offset:{1024*s_}')
    for i in range(8): a(f'v_cvt_pk_bf16_f32 {vr(132+i)}, {vr(100+2*i)}, {vr(100+2*i+1)}')
    for i in range(8): a(f'v_cvt_pk_bf16_f32 {vr(140+i)}, {vr(116+2*i)}, {vr(116+2*i+1)}')
    a(f'v_add_u32 {vr(230)}, s97, {vr(L16)}')
    a(f'v_add_u32 {vr(231)}, s97, {vr(227)}')
    for i in range(4): a(f'v_permlane16_swap_b32 {vr(140+i)}, {vr(144+i)}')
    a(f'ds_write_b128 {vr(230)}, {vr(132,4)} offset:3072')
    a(f'ds_write_b128 {vr(230)}, {vr(136,4)} offset:4096')
    a(f'ds_write_b128 {vr(231)}, {vr(140,4)} offset:5120')
    a(f's_add_u32 {sr(S_T3)}, {sr(S_T3)}, 3072')
    a(f'buffer_store_dwordx4 {vr(132,4)}, {vr(L16)}, {sr(R_WS,4)}, {sr(S_T3)} offen')
    a(f'buffer_store_dwordx4 {vr(136,4)}, {vr(L16)}, {sr(R_WS,4)}, {sr(S_T3)} offen offset:1024')
    a(f'buffer_store_dwordx4 {vr(140,4)}, {vr(227)}, {sr(R_WS,4)}, {sr(S_T3)} offen offset:2048')
    a(f's_add_u32 {sr(S_TILE)}, {sr(S_TILE)}, 1')
    a(f's_cmp_eq_u32 {sr(S_TILE)}, 1')
    a('s_cbranch_scc1 L_kv')
    a(f's_cmp_eq_u32 {sr(S_TILE)}, 3')
    a('s_cbranch_scc1 L_kv_ret2')
    a(f'v_mov_b32 {vr(T0)}, 4')
    a(f'global_load_dword {vr(237)}, {vr(T0)}, {sr(S_DBG,2)} sc1')
    a(f's_lshl_b32 {sr(S_T)}, {sr(S_WIN)}, 2')
    a(f's_add_u32 {sr(S_T)}, {sr(S_T)}, 32')
    a(f'v_mov_b32 {vr(T1)}, {sr(S_T)}')
    a(f'global_load_dword {vr(238)}, {vr(T1)}, {sr(S_DBG,2)} sc1')
    a('L_cp_skip:')
    a('s_waitcnt lgkmcnt(0)')
    a('s_barrier')
    stamp(a, 2)
    a('s_branch L_kv')
    a('L_kv_ret2:')
    zero_O()
    setup_addr()
    epi_addr()
    a(f's_sub_u32 {sr(S_T)}, {sr(S_Q0)}, 12')
    a(f's_mul_i32 {sr(S_T)}, {sr(S_T)}, 3072')
    a(f's_add_u32 {sr(S_T)}, {sr(S_T)}, {QB_L}')
    a(f'v_add_u32 {vr(T0)}, {sr(S_T)}, {vr(L16)}')
    for s_ in range(3): a(f'ds_read_b128 {vr(QF[0]+4*s_,4)}, {vr(T0)} offset:{1024*s_}')
    for s_ in range(3): a(f'ds_read_b128 {vr(K+4*s_,4)}, {vr(L16)} offset:{1024*s_}')
    a('s_waitcnt lgkmcnt(0)')
    a('s_branch L_B')
    def get_nonce(tag):
        a(f's_mov_b32 {sr(S_T4)}, 0')
        a(f'L_gn{tag}:')
        a(f'v_mov_b32 {vr(T0)}, 4')
        a(f'global_load_dword {vr(T1)}, {vr(T0)}, {sr(S_DBG,2)} sc1')
        a('s_waitcnt vmcnt(0)')
        a(f'v_readfirstlane_b32 s92, {vr(T1)}')
        a('s_cmp_lg_u32 s92, 0')
        a(f's_cbranch_scc1 L_gnd{tag}')
        a(f's_add_u32 {sr(S_T4)}, {sr(S_T4)}, 1')
        a(f's_cmp_lt_u32 {sr(S_T4)}, 0x40000')
        a(f's_cbranch_scc1 L_gn{tag}')
        a(f'L_gnd{tag}:')
    def arrive(tag):
        a('s_waitcnt vmcnt(0)')
        a(f'v_mov_b32 {vr(T0)}, {CNT_L}')
        a(f'v_mov_b32 {vr(T1)}, 1')
        a('s_mov_b64 exec, 1')
        a(f'ds_add_u32 {vr(T0)}, {vr(T1)}')
        a('s_mov_b64 exec, -1')
        a(f's_cmp_eq_u32 {sr(S_B)}, 0')
        a(f's_cbranch_scc0 L_nopub{tag}')
        a(f's_mov_b32 {sr(S_T4)}, 0')
        a(f'L_cw{tag}:')
        a(f'ds_read_b32 {vr(T2)}, {vr(T0)}')
        a('s_waitcnt lgkmcnt(0)')
        a(f'v_readfirstlane_b32 {sr(S_T)}, {vr(T2)}')
        a(f's_cmp_eq_u32 {sr(S_T)}, 4')
        a(f's_cbranch_scc1 L_cg{tag}')
        a('s_sleep 1')
        a(f's_add_u32 {sr(S_T4)}, {sr(S_T4)}, 1')
        a(f's_cmp_lt_u32 {sr(S_T4)}, 0x100000')
        a(f's_cbranch_scc1 L_cw{tag}')
        a(f'L_cg{tag}:')
        a(f's_mov_b64 exec, 1')
        a(f'v_mov_b32 {vr(T3)}, {vr(238)}')
        a(f's_mul_i32 {sr(S_T2)}, {sr(S_XCC)}, {sr(S_XCC)}')
        a(f's_lshl_b32 {sr(S_T2)}, {sr(S_T2)}, 18')
        a(f's_lshl_b32 {sr(S_T3)}, {sr(S_XCC)}, 10')
        a(f's_add_u32 {sr(S_T2)}, {sr(S_T2)}, {sr(S_T3)}')
        a(f's_add_u32 {sr(S_T2)}, {sr(S_T2)}, 4')
        a(f'v_readfirstlane_b32 {sr(S_T)}, {vr(T3)}')
        a(f's_lshl_b32 {sr(S_T3)}, {sr(S_WIN)}, 2')
        a(f's_add_u32 {sr(S_T3)}, {sr(S_T3)}, {sr(S_QTR)}')
        a(f's_lshl_b32 {sr(S_T3)}, {sr(S_T3)}, 7')
        a(f's_add_u32 {sr(S_T3)}, {sr(S_T3)}, {KVF_OFF}')
        a(f'v_mov_b32 {vr(T0)}, 0')
        a(f'v_mov_b32 {vr(T1)}, s92')
        a(f's_cmp_eq_u32 {sr(S_T)}, {sr(S_T2)}')
        if 'slowpub' not in OPT: a(f's_cbranch_scc1 L_fast{tag}')
        a('buffer_wbl2 sc1')
        a('s_waitcnt vmcnt(0)')
        a(f'buffer_store_dword {vr(T1)}, {vr(T0)}, {sr(R_WS,4)}, {sr(S_T3)} offen sc1')
        a(f's_branch L_nopub{tag}')
        a(f'L_fast{tag}:')
        a(f'buffer_store_dword {vr(T1)}, {vr(T0)}, {sr(R_WS,4)}, {sr(S_T3)} offen')
        a(f'L_nopub{tag}:')
        a(f's_mov_b64 exec, -1')
        a('s_waitcnt lgkmcnt(0)')
    def job_prologue(jobs):
        j0, j1 = jobs[0], jobs[1]
        o = j0['off']*LT_B
        for s in range(3): a(f'ds_read_b128 {vr(K+4*s,4)}, {vr(AK)} offset:{o+1024*s}')
        a(f'ds_read_b128 {vr(V0,4)}, {vr(AVA)} offset:{o+3072}')
        a(f'ds_read_b128 {vr(V0+4,4)}, {vr(AVA)} offset:{o+4096}')
        a(f'ds_read_b128 {vr(V1,4)}, {vr(AV0)} offset:{o+5120}')
        a(f'ds_read_b128 {vr(V1+4,4)}, {vr(AV1)} offset:{o+5120}')
        a('s_waitcnt lgkmcnt(4)')
        S = SBUF[0]; q = j0['q']
        a(mf(S, K, QF[q], vr(NM[q],16))); a(mf(S, K+4, QF[q]+4, vr(S,16))); a(mf(S, K+8, QF[q]+8, vr(S,16)))
        if j1['off'] != j0['off']:
            for s in range(3): a(f'ds_read_b128 {vr(K+4*s,4)}, {vr(AK)} offset:{j1["off"]*LT_B+1024*s}')
        a('s_nop 15')
        for i in range(NPRE): a(f'v_exp_f32 {vr(S+i)}, {vr(S+i)}')
        a('s_waitcnt lgkmcnt(0)')
    def grp_start(): return [f's_cmp_eq_u32 {sr(S_REG)}, 2', f's_cselect_b32 {sr(S_DELTA)}, {sr(S_GM)}, {sr(S_GP)}']
    def grp_end(): return [f's_add_u32 {sr(S_REG)}, {sr(S_REG)}, 1', f's_cmp_eq_u32 {sr(S_REG)}, 3', f's_cselect_b32 {sr(S_REG)}, 0, {sr(S_REG)}', f's_add_u32 {sr(S_G)}, {sr(S_G)}, 1']
    jobsA = [dict(q=q, off=u) for u in range(8) for q in range(3)]
    nA = len(jobsA)
    hooksA = {(0, 'QK1'): grp_start(),
              (16, 'QK1'): [f's_cmp_eq_u32 {sr(S_G)}, 1', 's_cbranch_scc1 L_midA', 'L_backA:'],
              (nA-1, 'PV2'): grp_end(),
              (nA-1, 'PV4'): ['s_barrier', f's_cmp_lt_u32 {sr(S_G)}, 6']}
    a('L_Amain:')
    a(f's_setprio {APRIO}')
    a(f's_mov_b32 s{S_FB}, 0')
    job_prologue(jobsA)
    a(f's_mov_b32 {sr(S_G)}, 0\ns_mov_b32 {sr(S_REG)}, 0')
    stamp(a, 3)
    a('.p2align 6')
    a('L_loopA:')
    for l in insert_waits(body(jobsA, hooksA)): a(l)
    if 'grp' in OPT:
        gstamp(a); a(f's_cmp_lt_u32 {sr(S_G)}, 6')
    a('s_cbranch_scc1 L_loopA')
    a(f'v_readfirstlane_b32 s92, {vr(XR0)}')
    for s_ in range(3): a(f'ds_read_b128 {vr(K+4*s_,4)}, {vr(AK)} offset:{LT_B+1024*s_}')
    a('s_cmp_lg_u32 s92, 0')
    a('s_cbranch_scc1 L_f1')
    get_nonce('f')
    a('L_f1:')
    a('s_waitcnt lgkmcnt(0)')
    jobsF = [dict(q=q, off=u) for q in range(3) for u in range(8)]
    send0 = L_chk(0) + ['s_cbranch_scc0 L_f0fail'] + L_pre(0) + L_send(0) + ['L_f0done:']
    send1 = [f's_cmp_eq_u32 {sr(S_RP)}, 1', 's_cbranch_scc0 L_fs1'] + L_chk(1) + ['s_cbranch_scc0 L_f1fail'] + L_pre(1) + L_send(1) + ['L_fs1:']
    def ld(R): return [f'buffer_load_dwordx4 {vr(R+4*g,4)}, {vr(L16)}, {sr(R_WS,4)}, {sr(S_BLK)} offen offset:{1024*g} sc1' for g in range(4)]
    spec = L_pre(2) + ld(NM[0]) + [f's_cmp_eq_u32 {sr(S_RP)}, 0', 's_cbranch_scc0 L_fsp'] + L_pre(1) + ld(NM[1]) + ['L_fsp:']
    hooksF = {(0, 'QK1'): grp_start(), (8, 'PV2'): send0, (16, 'PV2'): send1, (SPECK, 'PV2'): spec, (23, 'PV4'): ['s_barrier']}
    for l in insert_waits(body(jobsF, hooksF)): a(l)
    a('s_branch L_epi')
    a('L_midA:')
    a('s_barrier')
    a('s_branch L_backA')
    a('L_f0fail:')
    a(f's_or_b32 s{S_FB}, s{S_FB}, 1')
    a('s_branch L_f0done')
    a('L_f1fail:')
    a(f's_or_b32 s{S_FB}, s{S_FB}, 2')
    a('s_branch L_fs1')
    a('L_B:')
    a(f's_setprio {BPRIO}')
    standin(0, SBUF[0])
    a('s_nop 15')
    standin2(0, SBUF[0])
    a('s_waitcnt vmcnt(0)')
    a(f'v_readfirstlane_b32 s92, {vr(237)}')
    a('s_cmp_lg_u32 s92, 0')
    a('s_cbranch_scc1 L_Bn')
    get_nonce('B')
    a('L_Bn:')
    arrive('B')
    jobsB = [dict(q=0, off=2*i) for i in range(4 if 'halfB' not in OPT else 2)]
    job_prologue(jobsB)
    a(f's_mov_b32 {sr(S_G)}, 0\ns_mov_b32 {sr(S_REG)}, 0\ns_mov_b32 s93, 0')
    stamp(a, 3)
    a('.p2align 6')
    a('L_loopB:')
    for l in grp_start(): a(l)
    a(f's_cmp_eq_u32 {sr(S_G)}, 0')
    a('s_cbranch_scc1 L_B_nd')
    a(f's_cmp_eq_u32 s93, 0')
    a('s_cbranch_scc1 L_firstB')
    a('L_firstB_ret:')
    a(f's_cmp_ge_u32 {sr(S_G)}, 5')
    a('s_cbranch_scc1 L_B_nd')
    a(f's_add_u32 {sr(S_U)}, {sr(S_G)}, 2')
    a(f's_lshl_b32 {sr(S_U)}, {sr(S_U)}, 3')
    a(f's_lshl_b32 {sr(S_T)}, {sr(S_B)}, 1')
    a(f's_add_u32 {sr(S_U)}, {sr(S_U)}, {sr(S_T)}')
    dma_u(a)
    a(f's_add_u32 {sr(S_U)}, {sr(S_U)}, 1')
    dma_u(a)
    a('L_B_nd:')
    if 'nowb' not in OPT:
        a(f's_cmp_eq_u32 {sr(S_G)}, {WBG}')
        a('s_cbranch_scc0 L_nowb')
        a(f's_cmp_eq_u32 {sr(S_WAVE)}, 7')
        a('s_cbranch_scc0 L_nowb')
        a(f's_cmp_lt_u32 s2, 8')
        a('s_cbranch_scc0 L_nowb')
        a('buffer_wbl2 sc1')
        a('L_nowb:')
    a(f's_cmp_eq_u32 {sr(S_G)}, 6')
    a('s_cbranch_scc0 L_B_nwo')
    a(f's_mov_b32 {sr(S_U)}, {sr(S_B)}')
    a('L_wo:')
    a(f's_lshl_b32 {sr(S_T)}, {sr(S_U)}, 10')
    a(f's_add_u32 m0, {sr(S_T)}, {WO_L}')
    a('s_nop 0')
    a(f'buffer_load_dwordx4 {vr(L16)}, {sr(R_WO,4)}, {sr(S_T)} offen lds')
    a(f's_add_u32 {sr(S_U)}, {sr(S_U)}, 4')
    a(f's_cmp_lt_u32 {sr(S_U)}, 18')
    a('s_cbranch_scc1 L_wo')
    a('L_B_nwo:')
    hooksB = {(1, 'QK1'): [f's_cmp_eq_u32 {sr(S_G)}, 1', 's_cbranch_scc1 L_midB', 'L_backB:']}
    for l in insert_waits(body(jobsB, hooksB)): a(l)
    for l in grp_end(): a(l)
    gstamp(a)
    a(f's_cmp_eq_u32 {sr(S_G)}, 1')
    a('s_cbranch_scc1 L_tryB')
    a(f's_cmp_eq_u32 {sr(S_G)}, 7')
    a('s_cbranch_scc1 L_B6')
    a('L_B6_ret:')
    a('s_waitcnt vmcnt(0)')
    a('L_firstB_done:')
    a('s_barrier')
    a(f's_cmp_lt_u32 {sr(S_G)}, 7')
    a('s_cbranch_scc1 L_loopB')
    a('s_branch L_epi')
    a('L_midB:')
    a('s_waitcnt vmcnt(12)')
    a('s_barrier')
    a('s_branch L_backB')
    a('L_B6:')
    a('s_waitcnt lgkmcnt(0)')
    a('s_nop 15')
    a(f's_lshr_b32 {sr(S_T)}, {sr(S_B)}, 1')
    a(f's_lshl_b32 {sr(S_T2)}, {sr(S_T)}, 2')
    a(f's_add_u32 {sr(S_T2)}, {sr(S_T2)}, {CNT_L+16}')
    a(f's_lshl_b32 {sr(S_T)}, {sr(S_T)}, 13')
    a(f's_add_u32 {sr(S_T)}, {sr(S_T)}, 122880')
    a(f'v_add_u32 {vr(T0)}, {sr(S_T)}, {vr(L16)}')
    a(f'v_mov_b32 {vr(T3)}, {sr(S_T2)}')
    a(f's_cmp_eq_u32 {sr(S_PAR)}, 1')
    a('s_cbranch_scc0 L_eB0')
    for i in range(7): a(f'ds_write_b128 {vr(T0)}, {vr(OA[0]+4*i,4)} offset:{1024*i}')
    a('s_waitcnt lgkmcnt(0)')
    a(f'v_mov_b32 {vr(T1)}, 1')
    a(f'ds_write_b32 {vr(T3)}, {vr(T1)}')
    a('s_waitcnt lgkmcnt(0)')
    a('s_branch L_B6_ret')
    a('L_eB0:')
    a(f's_mov_b32 {sr(S_T4)}, 0')
    a('L_eBw:')
    a(f'ds_read_b32 {vr(T1)}, {vr(T3)}')
    a('s_waitcnt lgkmcnt(0)')
    a(f'v_readfirstlane_b32 {sr(S_T)}, {vr(T1)}')
    a(f's_cmp_eq_u32 {sr(S_T)}, 1')
    a('s_cbranch_scc1 L_eBg')
    a('s_sleep 1')
    a(f's_add_u32 {sr(S_T4)}, {sr(S_T4)}, 1')
    a(f's_cmp_lt_u32 {sr(S_T4)}, 0x100000')
    a('s_cbranch_scc1 L_eBw')
    a('L_eBg:')
    for i in range(7): a(f'ds_read_b128 {vr(NM[1]+4*i,4)}, {vr(T0)} offset:{1024*i}')
    a('s_waitcnt lgkmcnt(0)')
    for i in range(28): a(f'v_add_f32 {vr(OA[0]+i)}, {vr(OA[0]+i)}, {vr(NM[1]+i)}')
    for l in L_chk(0): a(l)
    a('s_cbranch_scc1 L_fb_retB')
    a(f's_mov_b32 s{S_FB}, 1')
    a('s_branch L_fb')
    a('L_fb_retB:')
    a(f's_cmp_eq_u32 {sr(S_RP)}, 1')
    a('s_cbranch_scc0 L_B6_ret')
    a(f's_mov_b32 {sr(S_Q)}, 0')
    for l in L_blk() + L_send(0): a(l)
    a('s_branch L_B6_ret')
    a('L_tryB:')
    a('s_cmp_eq_u32 s93, 1')
    a('s_cbranch_scc1 L_firstB_done')
    a(f's_mov_b32 s94, {TRYN}')
    a(f's_mov_b32 s95, 0')
    a('s_branch L_pollB')
    a('L_firstB:')
    a(f's_mov_b32 s94, 0x40000')
    a(f's_mov_b32 s95, 1')
    a('L_pollB:')
    a(f's_lshl_b32 {sr(S_T3)}, {sr(S_WIN)}, 9')
    a(f's_add_u32 {sr(S_T3)}, {sr(S_T3)}, {KVF_OFF}')
    a(f'v_lshlrev_b32 {vr(T0)}, 7, {vr(LANE)}')
    a(f's_mov_b32 {sr(S_T4)}, 0')
    lstamp(a, 8)
    a('L_poll:')
    a('s_mov_b64 exec, 15')
    a(f'buffer_load_dword {vr(T1)}, {vr(T0)}, {sr(R_WS,4)}, {sr(S_T3)} offen sc1')
    a('s_waitcnt vmcnt(0)')
    a(f'v_cmp_eq_u32 vcc, s92, {vr(T1)}')
    a('s_mov_b64 exec, -1')
    a('s_cmp_eq_u32 vcc_lo, 15')
    a('s_cbranch_scc1 L_polled')
    a(f's_add_u32 {sr(S_T4)}, {sr(S_T4)}, 1')
    a(f's_cmp_lt_u32 {sr(S_T4)}, s94')
    a('s_cbranch_scc0 L_giveup')
    a('s_sleep 2')
    a('s_branch L_poll')
    a('L_giveup:')
    a('s_cmp_eq_u32 s95, 0')
    a('s_cbranch_scc1 L_firstB_done')

    a('L_polled:')
    lstamp(a, 9)
    a(f's_lshl_b32 {sr(S_T)}, {sr(S_B)}, 2')
    a(f's_add_u32 {sr(S_T)}, {sr(S_T)}, 14')
    pads(S_T, 24)
    a(f's_add_u32 {sr(S_U)}, {sr(S_B)}, 14')
    a('L_first:')
    dma_u(a)
    a(f's_add_u32 {sr(S_U)}, {sr(S_U)}, 4')
    a(f's_cmp_lt_u32 {sr(S_U)}, 24')
    a('s_cbranch_scc1 L_first')
    lstamp(a, 11)
    a('s_waitcnt lgkmcnt(0)')
    a('s_mov_b32 s93, 1')
    a('s_cmp_eq_u32 s95, 0')
    a('s_cbranch_scc1 L_firstB_done')

    a('s_branch L_firstB_ret')
    a('L_epi:')
    stamp(a, 4)
    a('s_setprio 0')
    OWN, PART = 0, 12
    R0, R1 = NM[0], NM[1]
    EACCX = 164
    def inbox_load(R):
        for g in range(4): a(f'buffer_load_dwordx4 {vr(R+4*g,4)}, {vr(L16)}, {sr(R_WS,4)}, {sr(S_BLK)} offen offset:{1024*g} sc1')
    a(f's_cmp_eq_u32 {sr(S_ISB)}, 1')
    a('s_cbranch_scc0 L_eA')
    a(f's_cmp_eq_u32 {sr(S_PAR)}, 1')
    a('s_cbranch_scc1 L_done')
    a(f's_cmp_eq_u32 {sr(S_RP)}, 0')
    a('s_cbranch_scc0 L_done')
    a(f's_mov_b32 {sr(S_Q)}, 0')
    for l in L_blk(): a(l)
    inbox_load(R0)
    for i in range(26): a(f'v_mov_b32 {vr(OA[2]+i)}, {vr(OA[0]+i)}')
    a(f's_mov_b32 {sr(S_NQ)}, 3')
    a('s_branch L_eC')
    a('L_eA:')
    a('s_nop 7')
    for l in L_chk(2): a(l)
    a('s_cbranch_scc1 L_eA2')
    a(f's_or_b32 s{S_FB}, s{S_FB}, 4')
    a('L_eA2:')
    a(f's_cmp_eq_u32 {sr(S_RP)}, 0')
    a('s_cbranch_scc0 L_eA3')
    for l in L_chk(1): a(l)
    a('s_cbranch_scc1 L_eA3')
    a(f's_or_b32 s{S_FB}, s{S_FB}, 2')
    a('L_eA3:')
    a(f's_cmp_lg_u32 s{S_FB}, 0')
    a('s_cbranch_scc1 L_fb')
    a('L_fb_retA:')
    a(f's_mov_b32 {sr(S_NQ)}, 2')
    a('L_eC:')
    WT0, WT1, OL = XR1, TR, CV
    WFO, WFP = 164, 200
    seq = [(s_, mt) for s_ in range(3) for mt in range(3)]
    for base, wt in ((WFO, WT0), (WFP, WT1)):
        for n, (s_, mt) in enumerate(seq):
            off = 16*s_*192 + mt*64
            a(f'ds_read_b64_tr_b16 {vr(base+4*n,2)}, {vr(wt)} offset:{off}')
            a(f'ds_read_b64_tr_b16 {vr(base+4*n+2,2)}, {vr(wt)} offset:{off+8*192}')
    E1 = [0, 16, 32]; OWN1 = 48
    E2 = [112, 68, 84]; OWN2 = 100
    S_BLK2, S_OB2 = 99, 100
    PTB = [48, 56, 132]; PT2, PT2b = 164, 188
    def check(R, blk, tag):
        L = [f'L_rchk{tag}:', f'v_cmp_eq_u32 vcc, s92, {vr(R+3)}', f'v_cmp_eq_u32 s[6:7], s92, {vr(R+7)}', 's_and_b64 vcc, vcc, s[6:7]',
             f'v_cmp_eq_u32 s[6:7], s92, {vr(R+11)}', 's_and_b64 vcc, vcc, s[6:7]', f'v_cmp_eq_u32 s[6:7], s92, {vr(R+15)}', 's_and_b64 vcc, vcc, s[6:7]',
             's_cmp_eq_u64 vcc, -1', f's_cbranch_scc0 L_rslow{tag}', f'L_rgot{tag}:']
        L += [f'v_mov_b32 {vr(R+i)}, {vr(R + 4*(i//3) + (i%3))}' for i in range(3, 12)]
        return L
    def slow(R, blk, tag):
        a(f'L_rslow{tag}:')
        a(f's_add_u32 s97, s97, 1')
        a(f's_cmp_lt_u32 s97, 0x40000')
        a(f's_cbranch_scc0 L_rgot{tag}')
        a(f's_cmp_le_u32 s97, {NFULL}')
        a(f's_cbranch_scc1 L_rfull{tag}')
        a(f'v_mov_b32 {vr(T1)}, {3072 + 63*16 + 12}')
        a(f'L_rpoll{tag}:')
        a('s_mov_b64 exec, 1')
        a(f'buffer_load_dword {vr(T2)}, {vr(T1)}, {sr(R_WS,4)}, s{blk} offen sc1')
        a('s_waitcnt vmcnt(0)')
        a('s_mov_b64 exec, -1')
        a(f'v_readfirstlane_b32 {sr(S_T)}, {vr(T2)}')
        a(f's_cmp_eq_u32 {sr(S_T)}, s92')
        a(f's_cbranch_scc1 L_rfull{tag}')
        a(f's_sleep {PSLEEP}')
        a(f's_add_u32 s97, s97, 1')
        a(f's_cmp_lt_u32 s97, 0x40000')
        a(f's_cbranch_scc1 L_rpoll{tag}')
        a(f'L_rfull{tag}:')
        for g in range(4): a(f'buffer_load_dwordx4 {vr(R+4*g,4)}, {vr(L16)}, {sr(R_WS,4)}, s{blk} offen offset:{1024*g} sc1')
        a('s_waitcnt vmcnt(0)')
        a(f's_branch L_rchk{tag}')
    OA4 = [236, 237, 238, 239]
    OG = [240, 241, 242, 243, 244, 245]
    OR_ = 246
    def pack_setup():
        a(f's_mul_i32 {sr(S_T)}, {sr(S_WAVE)}, 6144')
        a(f'v_lshlrev_b32 {vr(T0)}, 2, {vr(LANE)}')
        a(f'v_add_u32 {vr(T0)}, {TBL_L}, {vr(T0)}')
        for i in range(6): a(f'ds_read_b32 {vr(OG[i])}, {vr(T0)} offset:{256*i}')
        a(f'v_and_b32 {vr(T0)}, 31, {vr(LANE)}')
        a(f'v_mul_u32_u24 {vr(T1)}, 192, {vr(T0)}')
        a(f'v_lshrrev_b32 {vr(T2)}, 5, {vr(LANE)}')
        a(f'v_lshlrev_b32 {vr(T2)}, 3, {vr(T2)}')
        a(f'v_add3_u32 {vr(T1)}, {vr(T1)}, {vr(T2)}, {sr(S_T)}')
        a(f'v_bfe_u32 {vr(T2)}, {vr(LANE)}, 2, 2')
        for g in range(4):
            a(f'v_xor_b32 {vr(T0)}, {g}, {vr(T2)}')
            a(f'v_lshl_add_u32 {vr(OA4[g])}, {vr(T0)}, 4, {vr(T1)}')
        a(f'v_add_u32 {vr(OR_)}, {sr(S_T)}, {vr(L16)}')
    def pack1(E, temps):
        L = []
        for mt in range(3):
            for g in range(4):
                P = temps[mt] + 2*g
                L += [f'v_cvt_pk_bf16_f32 {vr(P)}, {vr(E[mt]+4*g)}, {vr(E[mt]+4*g+1)}', f'v_cvt_pk_bf16_f32 {vr(P+1)}, {vr(E[mt]+4*g+2)}, {vr(E[mt]+4*g+3)}',
                      f'ds_write_b64 {vr(OA4[g])}, {vr(P,2)} offset:{64*mt}']
        return L
    def pack2(temps, ob):
        L = [f'ds_read_b128 {vr(temps+4*i,4)}, {vr(OR_)} offset:{1024*i}' for i in range(6)]
        L += ['s_waitcnt lgkmcnt(0)']
        fl = ' nt' if 'outnt' in OPT else ' sc1' if 'outsc1' in OPT else '' if 'outplain' in OPT else ' sc0 sc1 nt' if 'outall' in OPT else ' sc0 sc1'
        L += [f'buffer_store_dwordx4 {vr(temps+4*i,4)}, {vr(OG[i])}, {sr(R_OUT,4)}, s{ob} offen{fl}' for i in range(6)]
        return L
    def mms(E, W, B, first):
        return [mf(E[mt], W+4*n, B+4*s_, '0' if (first and s_ == 0) else vr(E[mt],16)) for n, (s_, mt) in enumerate(seq)]
    def weave(ms, fill, start=0):
        n = len(ms) - start; fi = 0
        for i, m in enumerate(ms):
            a(m)
            if i >= start:
                want = ((i - start + 1) * len(fill)) // n
                while fi < want:
                    a(fill[fi]); fi += 1
    pack_setup()
    a('s_mov_b32 s97, 0')
    for l in L_norm(2, lambda i: OWN1 + i) + L_ts(2): a(l)
    a(f's_cmp_eq_u32 {sr(S_NQ)}, 3')
    a(f's_cselect_b32 {sr(S_Q)}, 0, {sr(S_Q)}')
    for l in L_blk(): a(l)
    lstamp(a, 18)
    a(f's_cmp_eq_u32 {sr(S_NQ)}, 2')
    a('s_cbranch_scc0 L_one')
    a(f's_cmp_eq_u32 {sr(S_RP)}, 0')
    a('s_cbranch_scc0 L_one')
    a(f's_mov_b32 s{S_BLK2}, {sr(S_BLK)}')
    a(f's_mov_b32 s{S_OB2}, {sr(S_OB)}')
    a('s_waitcnt lgkmcnt(0)')
    weave(mms(E1, WFO, OWN1, True), L_norm(1, lambda i: OWN2 + i) + L_ts(1) + L_blk(), start=1)
    lstamp(a, 19)
    a('s_waitcnt vmcnt(0)')
    for l in check(R0, S_BLK2, 'a'): a(l)
    lstamp(a, 20)
    a('s_nop 1')
    for m in mms(E1, WFP, R0, False): a(m)
    weave(mms(E2, WFO, OWN2, True), pack1(E1, PTB), start=2)
    for l in check(R1, S_BLK, 'b'): a(l)
    a('s_nop 1')
    weave(mms(E2, WFP, R1, False), pack2(PT2, S_OB2), start=1)
    a('s_nop 7')
    for l in pack1(E2, PTB): a(l)
    a('s_waitcnt lgkmcnt(0)')
    for l in pack2(PT2b, S_OB): a(l)
    lstamp(a, 21)
    a('s_branch L_done')
    a('L_one:')
    a('s_waitcnt lgkmcnt(0)')
    for m in mms(E1, WFO, OWN1, True): a(m)
    lstamp(a, 19)
    a('s_waitcnt vmcnt(0)')
    for l in check(R0, S_BLK, 'c'): a(l)
    lstamp(a, 20)
    a('s_nop 1')
    for m in mms(E1, WFP, R0, False): a(m)
    a('s_nop 7')
    for l in pack1(E1, PTB): a(l)
    a('s_waitcnt lgkmcnt(0)')
    for l in pack2(164, S_OB): a(l)
    lstamp(a, 21)
    a('s_branch L_done')
    slow(R0, S_BLK2, 'a'); slow(R1, S_BLK, 'b'); slow(R0, S_BLK, 'c')
    a('L_fb:')
    for q in range(3):
        a(f's_bitcmp1_b32 s{S_FB}, {q}')
        a(f's_cbranch_scc0 L_fbn{q}')
        for l in L_fallback(q): a(l)
        if q == 0:
            a(f's_cmp_eq_u32 {sr(S_ISB)}, 1')
            a('s_cbranch_scc1 L_fb_retB')
            for l in L_ts(0) + L_blk() + L_sendG(0, 164): a(l)
        if q == 1:
            a(f's_cmp_eq_u32 {sr(S_RP)}, 1')
            a(f's_cbranch_scc0 L_fbn{q}')
            for l in L_ts(1) + L_blk() + L_sendG(1, 164): a(l)
        a(f'L_fbn{q}:')
    a('s_waitcnt vmcnt(0)')
    a('s_branch L_fb_retA')
    a('L_done:')
    if 'endwb' in OPT or 'endwb0' in OPT:
        a(f's_cmp_eq_u32 {sr(S_ISB)}, 1')
        a('s_cbranch_scc1 L_noewb')
        if 'endwb0' in OPT:
            a(f's_cmp_eq_u32 {sr(S_WAVE)}, 0')
            a('s_cbranch_scc0 L_noewb')
        a('s_waitcnt vmcnt(0)')
        a('buffer_wbl2 sc1')
        a('L_noewb:')
    if 'dstamp' in OPT:
        a('s_waitcnt vmcnt(0)')
        stamp(a, 5)
        a('s_memrealtime s[70:71]')
        a('s_waitcnt lgkmcnt(0)')
        a(f's_cmp_eq_u32 s2, {int([o for o in OPT if o.startswith("wg")][0][2:]) if [o for o in OPT if o.startswith("wg")] else 0}')
        a('s_cbranch_scc0 L_end')
        a(f's_cmp_eq_u32 {sr(S_WAVE)}, 0')
        a('s_cbranch_scc0 L_end')
        P = SBUF[0]
        for i in range(5):
            a(f's_sub_u32 {sr(S_T)}, {sr(S_TM+2*i+2)}, {sr(S_TM+2*i)}')
            a(f'v_mov_b32 {vr(P+i)}, {sr(S_T)}')
        a(f's_sub_u32 {sr(S_T)}, s70, s66')
        a(f'v_mov_b32 {vr(P+5)}, {sr(S_T)}')
        a(f'v_mov_b32 {vr(T0)}, 0')
        a(f's_mov_b64 exec, 1')
        a(f'global_store_dwordx4 {vr(T0)}, {vr(P,4)}, {sr(S_DBG,2)} offset:8')
        a(f'global_store_dwordx2 {vr(T0)}, {vr(P+4,2)}, {sr(S_DBG,2)} offset:24')
        a('s_waitcnt vmcnt(0)')
    elif 'stamp' in OPT:
        a('s_waitcnt vmcnt(0)')
        stamp(a, 5)
        a('s_memrealtime s[70:71]')
        a('s_waitcnt lgkmcnt(0)')
        a(f's_lshl_b32 {sr(S_T)}, s2, 3')
        a(f's_add_u32 {sr(S_T)}, {sr(S_T)}, {sr(S_WAVE)}')
        a(f's_lshl_b32 {sr(S_T)}, {sr(S_T)}, 7')
        a(f's_add_u32 {sr(S_T)}, {sr(S_T)}, {STAT_OFF}')
        P = SBUF[0]
        for i in range(6): a(f'v_mov_b32 {vr(P+i)}, {sr(S_TM+2*i)}')
        a(f'v_mov_b32 {vr(P+6)}, s66')
        a(f'v_mov_b32 {vr(P+7)}, s70')
        if 'grp' in OPT:
            a(f'v_lshlrev_b32 {vr(T0)}, 2, {vr(LANE)}')
            a(f's_mov_b64 exec, 0xffffff')
            a(f'buffer_store_dword {vr(ST)}, {vr(T0)}, {sr(R_WS,4)}, {sr(S_T)} offen offset:32')
        a(f'v_mov_b32 {vr(T0)}, 0')
        a(f's_mov_b64 exec, 1')
        a(f'buffer_store_dwordx4 {vr(P,4)}, {vr(T0)}, {sr(R_WS,4)}, {sr(S_T)} offen')
        a(f'buffer_store_dwordx4 {vr(P+4,4)}, {vr(T0)}, {sr(R_WS,4)}, {sr(S_T)} offen offset:16')
        a('s_waitcnt vmcnt(0)')
    a('L_end:')
    a('s_endpgm')
    gen_v1.kd(a, KNAME, NVGPR, 102)

def gen():
    assert all((p*3277) >> 16 == p//20 for p in range(1920))
    assert all((p*5462) >> 16 == p//12 for p in range(384))
    a = Asm()
    a(f'; @launch grid=(224,1,1) block=(512,1,1) lds={LDS_BYTES}')
    a('.amdgcn_target "amdgcn-amd-amdhsa--gfx950"')
    a('.text')
    gen_attn(a)
    return a.text()

if __name__ == '__main__':
    OPT.update(sys.argv[2:])
    for o in list(OPT):
        if o.startswith('gw'): GW = int(o[2:])
        if o.startswith('speck'): SPECK = int(o[5:])
        if o.startswith('nfull'): NFULL = int(o[5:])
        if o.startswith('wbg'): WBG = int(o[3:])
        if o.startswith('bp'): BPRIO = int(o[2:])
        if o.startswith('ap'): APRIO = int(o[2:])
        if o.startswith('dist'): DIST[:] = [int(c) for c in o[4:]]
        if o.startswith('arrk'): ARRK = int(o[4:])
        if o.startswith('tryn'): TRYN = int(o[4:])
    if 'dstamp' in OPT: OPT.add('stamp')
    open(sys.argv[1], 'w').write(gen())
```
